```python
import torch

def _softmax(x, axis=-1):
    return torch.softmax(x, dim=axis)
def _gelu(x):
    return torch.nn.functional.gelu(x, approximate="tanh")
def _silu(x):
    return torch.nn.functional.silu(x)
def _sigmoid(x):
    return torch.sigmoid(x)
def _layernorm(x, axis=-1, eps=1e-5):
    m = x.mean(dim=axis, keepdim=True)
    v = x.var(dim=axis, keepdim=True, unbiased=False)
    return (x - m) / torch.sqrt(v + eps)
def _scatter_add(tgt, idx, src, axis=0):
    return tgt.clone().index_add_(axis, idx, src)
def _segment_sum(src, seg, n):
    out = torch.zeros((n,) + src.shape[1:], dtype=src.dtype)
    return out.index_add_(0, seg, src)
def _pad(x, pw):
    flat = tuple(v for pair in reversed(pw) for v in pair)
    return torch.nn.functional.pad(x, flat)

kernel_name = 'standalone__geglu_ffn__prompt'

def setup_inputs():

    _w = (lambda a: (lambda t: t.to(torch.bfloat16) if t.is_floating_point() else t)(torch.as_tensor(a)))
    B, S, D, F = 1, 2048, 640, 1728
    return {
        "x": _w((lambda *s: torch.randn(*s, dtype=torch.bfloat16) * 0.05)(B, S, D)),
        "w_gate": _w((lambda *s: torch.randn(*s, dtype=torch.bfloat16) * 0.05)(D, F)),
        "w_up": _w((lambda *s: torch.randn(*s, dtype=torch.bfloat16) * 0.05)(D, F)),
        "w_down": _w((lambda *s: torch.randn(*s, dtype=torch.bfloat16) * 0.05)(F, D)),
    }

def reference(x, w_gate, w_up, w_down):
    return (_gelu(x @ w_gate) * (x @ w_up)) @ w_down
```

```python
import sys

HDR = """; Kernarg layout for this problem (56 bytes, ptrs only, base s[0:1]):
; @launch kernel=geglu_k1_kernel grid=(256,1,1) block=(512,1,1) lds=%d
; @launch kernel=geglu_k2_kernel grid=(256,1,1) block=(512,1,1) lds=%d
.amdgcn_target "amdgcn-amd-amdhsa--gfx950"
.text
"""

class E:
    def __init__(self):
        self.l = []
    def __call__(self, s):
        for x in s.strip('\n').split('\n'):
            self.l.append('    ' + x.strip() if not x.strip().endswith(':') else x.strip())
    def text(self):
        return '\n'.join(self.l) + '\n'

def interleave(mf, rd, lead=0, every=1):
    out = []
    rd = list(rd)
    for _ in range(lead):
        if rd: out.append(rd.pop(0))
    for i, m in enumerate(mf):
        out.append(m)
        if (i % every) == every - 1 and rd:
            out.append(rd.pop(0))
    out.extend(rd)
    return out

C0 = -2.0 * 1.4426950408889634 * 0.7978845608028654
C1 = C0 * 0.044715
import struct
def f2u(f):
    return struct.unpack('<I', struct.pack('<f', f))[0]

K1_BUF = 45056
K1_NBUF = 3
K1_LDS = K1_BUF * K1_NBUF
K1_EPI = K1_BUF
K1_EPITCH = 240
K1_EMAT = 128 * K1_EPITCH

def gen_k1(e):
    NST = 10
    e("""
.globl geglu_k1_kernel
.p2align 8
.type geglu_k1_kernel,@function
geglu_k1_kernel:
s_cmp_ge_u32 s2, 256
s_cbranch_scc1 L1_end
s_load_dwordx4 s[4:7], s[0:1], 0
s_load_dwordx2 s[28:29], s[0:1], 16
s_load_dwordx2 s[30:31], s[0:1], 48
s_and_b32 s32, s2, 7
s_lshr_b32 s33, s2, 3
s_lshr_b32 s34, s32, 2
s_and_b32 s35, s32, 3
s_and_b32 s36, s33, 7
s_lshl_b32 s34, s34, 3
s_add_u32 s34, s34, s36
s_lshr_b32 s36, s33, 3
s_lshl_b32 s35, s35, 2
s_add_u32 s35, s35, s36
s_mul_i32 s36, s35, 27
s_lshr_b32 s36, s36, 2
s_lshl_b32 s37, s36, 5
s_lshl_b32 s38, s34, 7
v_lshrrev_b32 v1, 6, v0
v_and_b32 v2, 63, v0
s_nop 0
v_readfirstlane_b32 s40, v1
s_waitcnt lgkmcnt(0)
s_mov_b32 s8, s4
s_and_b32 s9, s5, 0xffff
s_mov_b32 s10, 2621440
s_mov_b32 s11, 0x00020000
s_mov_b32 s12, s6
s_and_b32 s13, s7, 0xffff
s_mov_b32 s14, 2211840
s_mov_b32 s15, 0x00020000
s_mov_b32 s16, s28
s_and_b32 s17, s29, 0xffff
s_mov_b32 s18, 2211840
s_mov_b32 s19, 0x00020000
s_mov_b32 s20, s30
s_and_b32 s21, s31, 0xffff
s_mov_b32 s22, 7077888
s_mov_b32 s23, 0x00020000
s_cmp_ge_u32 s40, 4
s_cbranch_scc1 L1_loader
""")
    XA, XB, WA, WB, ACC = 16, 32, 48, 76, 104
    e("""
s_and_b32 s41, s40, 1
s_lshr_b32 s42, s40, 1
v_and_b32 v3, 15, v2
v_lshrrev_b32 v4, 4, v2
v_lshrrev_b32 v5, 1, v3
s_lshl_b32 s43, s41, 13
v_lshlrev_b32 v6, 7, v3
v_add_u32 v6, s43, v6
v_xor_b32 v7, v4, v5
v_lshlrev_b32 v7, 4, v7
v_add_u32 v8, v6, v7
v_xor_b32 v9, 64, v8
""")
    e(f"""
v_add_u32 v10, {K1_BUF}, v8
v_add_u32 v11, {K1_BUF}, v9
v_add_u32 v12, {2*K1_BUF}, v8
v_add_u32 v13, {2*K1_BUF}, v9
""")
    e(f"""
v_lshrrev_b32 v5, 1, v4
v_lshlrev_b32 v5, 4, v5
v_and_b32 v6, 1, v4
v_lshl_add_u32 v5, v6, 2, v5
v_bfe_u32 v6, v2, 2, 2
v_add_u32 v5, v5, v6
v_mul_u32_u24 v5, 224, v5
v_and_b32 v6, 3, v2
v_lshl_add_u32 v5, v6, 3, v5
s_mul_i32 s43, s42, 14336
s_add_u32 s43, s43, 16384
v_add_u32 v14, s43, v5
v_add_u32 v15, {K1_BUF}, v14
v_add_u32 v1, {2*K1_BUF}, v14
""")
    xaddr = {(0,0):'v8',(0,1):'v9',(1,0):'v10',(1,1):'v11',(2,0):'v12',(2,1):'v13'}
    waddr = {0:'v14',1:'v15',2:'v1'}
    e(f"""
s_lshl_b32 s43, s41, 6
v_add_u32 v3, s43, v3
v_mul_u32_u24 v3, {K1_EPITCH}, v3
v_lshl_add_u32 v3, v4, 3, v3
s_mul_i32 s43, s42, {K1_EMAT}
s_add_u32 s43, s43, {K1_EPI}
v_add_u32 v3, s43, v3
""")
    for i in range(112):
        e(f"v_mov_b32 v{ACC+i}, 0")

    def reads(s, ks, X, W):
        b = s % K1_NBUF
        r = []
        for rb in range(4):
            r.append(f"ds_read_b128 v[{X+4*rb}:{X+4*rb+3}], {xaddr[(b,ks)]} offset:{rb*2048}")
        for cb in range(7):
            for h in range(2):
                off = (32*ks + 8*h)*224 + 32*cb
                r.append(f"ds_read_b64_tr_b16 v[{W+4*cb+2*h}:{W+4*cb+2*h+1}], {waddr[b]} offset:{off}")
        return r
    def mfmas(X, W):
        m = []
        for cb in range(7):
            for rb in range(4):
                a = ACC + 4*(rb*7+cb)
                m.append(f"v_mfma_f32_16x16x32_bf16 v[{a}:{a+3}], v[{W+4*cb}:{W+4*cb+3}], v[{X+4*rb}:{X+4*rb+3}], v[{a}:{a+3}]")
        return m
    e("s_barrier")
    for r in reads(0,0,XA,WA): e(r)
    for r in reads(0,1,XB,WB): e(r)
    e("s_waitcnt lgkmcnt(15)")
    for m in mfmas(XA,WA): e(m)
    e("s_waitcnt lgkmcnt(0)")
    for s in range(1, NST):
        e("s_barrier")
        for x in interleave(mfmas(XB,WB), reads(s,0,XA,WA), lead=1): e(x)
        e("s_waitcnt lgkmcnt(0)")
        for x in interleave(mfmas(XA,WA), reads(s,1,XB,WB), lead=1): e(x)
        e("s_waitcnt lgkmcnt(0)")
    for m in mfmas(XB,WB): e(m)
    e("s_nop 7")
    t = 16
    k = 0
    for cb in range(7):
        for rb in range(4):
            a = ACC + 4*(rb*7+cb)
            tt = t + 2*(k % 8); k += 1
            e(f"v_cvt_pk_bf16_f32 v{tt}, v{a}, v{a+1}")
            e(f"v_cvt_pk_bf16_f32 v{tt+1}, v{a+2}, v{a+3}")
            e(f"ds_write_b64 v3, v[{tt}:{tt+1}] offset:{rb*16*K1_EPITCH + cb*32}")
            if k % 8 == 0:
                e("s_waitcnt lgkmcnt(0)")
    e("s_waitcnt lgkmcnt(0)")
    e("s_branch L1_epi")
    e("L1_loader:")
    e("""
s_sub_u32 s41, s40, 4
s_lshr_b32 s42, s41, 1
s_and_b32 s43, s41, 1
s_cmp_eq_u32 s42, 0
s_cselect_b32 s24, s12, s16
s_cselect_b32 s25, s13, s17
s_mov_b32 s26, 2211840
s_mov_b32 s27, 0x00020000
v_lshrrev_b32 v3, 3, v2
v_and_b32 v4, 7, v2
v_lshrrev_b32 v5, 4, v2
s_lshl_b32 s44, s41, 5
s_add_u32 s44, s44, s38
v_add_u32 v3, s44, v3
v_mov_b32 v6, 0x500
v_mul_lo_u32 v3, v3, v6
v_xor_b32 v6, v4, v5
v_lshlrev_b32 v6, 4, v6
v_add_u32 v16, v3, v6
v_xor_b32 v6, 64, v6
v_add_u32 v17, v3, v6
v_add_u32 v17, 10240, v17
v_add_u32 v18, 20480, v16
v_add_u32 v19, 20480, v17
""")
    e("s_mul_i32 s44, s43, 448")
    for dd in range(7):
        e(f"""
v_add_u32 v3, {64*dd}, v2
v_add_u32 v3, s44, v3
v_mul_u32_u24 v4, 4682, v3
v_lshrrev_b32 v4, 16, v4
v_mul_u32_u24 v5, 14, v4
v_sub_u32 v5, v3, v5
v_and_b32 v6, 0x33, v4
v_bfe_u32 v7, v4, 2, 1
v_lshl_add_u32 v6, v7, 3, v6
v_bfe_u32 v7, v4, 3, 1
v_lshl_add_u32 v6, v7, 2, v6
v_mul_u32_u24 v6, 0xd80, v6
v_lshl_add_u32 v6, v5, 4, v6
v_add_u32 v{20+dd}, s37, v6
""")
    e("""
s_lshl_b32 s45, s41, 12
s_mul_i32 s46, s42, 14336
s_mul_i32 s47, s43, 7168
s_add_u32 s46, s46, s47
s_add_u32 s46, s46, 16384
""")
    def issue(s):
        b = s % K1_NBUF
        e(f"s_mov_b32 s48, {s*128}")
        e(f"s_mov_b32 s49, {s*221184}")
        for dd in range(4):
            e(f"s_add_u32 m0, s45, {b*K1_BUF + dd*1024}")
            e("s_nop 0")
            e(f"buffer_load_dwordx4 v{16+dd}, s[8:11], s48 offen lds")
        for dd in range(7):
            e(f"s_add_u32 m0, s46, {b*K1_BUF + dd*1024}")
            e("s_nop 0")
            e(f"buffer_load_dwordx4 v{20+dd}, s[24:27], s49 offen lds")
    for s in range(3): issue(s)
    for s in range(NST):
        if s == 0: n = 22
        elif s == NST-1: n = 0
        else: n = 11
        e(f"s_waitcnt vmcnt({n})")
        e("s_barrier")
        if s >= 1 and s+2 < NST: issue(s+2)
    e("L1_epi:")
    e("s_barrier")
    e(f"""
v_mov_b32 v4, {hex(f2u(C0))}
v_mov_b32 v5, {hex(f2u(C0))}
v_mov_b32 v6, {hex(f2u(C1))}
v_mov_b32 v7, {hex(f2u(C1))}
v_mov_b32 v8, 1.0
v_mov_b32 v9, 1.0
s_mul_i32 s44, s38, 3456
s_add_u32 s44, s44, s37
""")
    NIT = 7
    base = 16
    for it in range(NIT):
        r = base + it*24
        A, G, U = r, r+2, r+4
        e(f"""
v_add_u32 v{A}, {512*it}, v0
v_mul_u32_u24 v{A+1}, 2341, v{A}
v_lshrrev_b32 v{A+1}, 16, v{A+1}
v_mul_u32_u24 v{G}, 28, v{A+1}
v_sub_u32 v{G}, v{A}, v{G}
v_mul_u32_u24 v{A}, {K1_EPITCH}, v{A+1}
v_lshl_add_u32 v{A}, v{G}, 3, v{A}
v_add_u32 v{A}, {K1_EPI}, v{A}
v_mul_u32_u24 v{A+1}, 0xd80, v{A+1}
v_lshl_add_u32 v{A+1}, v{G}, 3, v{A+1}
ds_read_b64 v[{G}:{G+1}], v{A}
ds_read_b64 v[{U}:{U+1}], v{A} offset:{K1_EMAT}
""")
    for it in range(NIT):
        r = base + it*24
        A, G, U = r, r+2, r+4
        g0, g1 = r+6, r+8
        u0, u1 = r+10, r+12
        t0, t1 = r+14, r+16
        o = r+18
        e(f"s_waitcnt lgkmcnt({2*(NIT-1-it)})")
        e(f"""
v_lshlrev_b32 v{g0}, 16, v{G}
v_and_b32 v{g0+1}, 0xffff0000, v{G}
v_lshlrev_b32 v{g1}, 16, v{G+1}
v_and_b32 v{g1+1}, 0xffff0000, v{G+1}
v_pk_mul_f32 v[{t0}:{t0+1}], v[{g0}:{g0+1}], v[{g0}:{g0+1}]
v_pk_mul_f32 v[{t1}:{t1+1}], v[{g1}:{g1+1}], v[{g1}:{g1+1}]
v_pk_fma_f32 v[{t0}:{t0+1}], v[{t0}:{t0+1}], v[6:7], v[4:5]
v_pk_fma_f32 v[{t1}:{t1+1}], v[{t1}:{t1+1}], v[6:7], v[4:5]
v_pk_mul_f32 v[{t0}:{t0+1}], v[{t0}:{t0+1}], v[{g0}:{g0+1}]
v_pk_mul_f32 v[{t1}:{t1+1}], v[{t1}:{t1+1}], v[{g1}:{g1+1}]
v_exp_f32 v{t0}, v{t0}
v_exp_f32 v{t0+1}, v{t0+1}
v_exp_f32 v{t1}, v{t1}
v_exp_f32 v{t1+1}, v{t1+1}
v_lshlrev_b32 v{u0}, 16, v{U}
v_and_b32 v{u0+1}, 0xffff0000, v{U}
v_pk_add_f32 v[{t0}:{t0+1}], v[{t0}:{t0+1}], v[8:9]
v_pk_add_f32 v[{t1}:{t1+1}], v[{t1}:{t1+1}], v[8:9]
v_rcp_f32 v{t0}, v{t0}
v_rcp_f32 v{t0+1}, v{t0+1}
v_rcp_f32 v{t1}, v{t1}
v_rcp_f32 v{t1+1}, v{t1+1}
v_lshlrev_b32 v{u1}, 16, v{U+1}
v_and_b32 v{u1+1}, 0xffff0000, v{U+1}
v_pk_mul_f32 v[{t0}:{t0+1}], v[{t0}:{t0+1}], v[{g0}:{g0+1}]
v_pk_mul_f32 v[{t1}:{t1+1}], v[{t1}:{t1+1}], v[{g1}:{g1+1}]
v_cvt_pk_bf16_f32 v{g0}, v{t0}, v{t0+1}
v_cvt_pk_bf16_f32 v{g1}, v{t1}, v{t1+1}
v_lshlrev_b32 v{t0}, 16, v{g0}
v_and_b32 v{t0+1}, 0xffff0000, v{g0}
v_lshlrev_b32 v{t1}, 16, v{g1}
v_and_b32 v{t1+1}, 0xffff0000, v{g1}
v_pk_mul_f32 v[{t0}:{t0+1}], v[{t0}:{t0+1}], v[{u0}:{u0+1}]
v_pk_mul_f32 v[{t1}:{t1+1}], v[{t1}:{t1+1}], v[{u1}:{u1+1}]
v_cvt_pk_bf16_f32 v{o}, v{t0}, v{t0+1}
v_cvt_pk_bf16_f32 v{o+1}, v{t1}, v{t1+1}
buffer_store_dwordx2 v[{o}:{o+1}], v{A+1}, s[20:23], s44 offen
""")
    e("L1_end:")
    e("s_endpgm")

K2_BUF = 36864
K2_NBUF = 4
K2_LDS = 163840
K2_EPI = 2*K2_BUF
K2_EPITCH = 336
K2_EW = 64*K2_EPITCH

def gen_k2(e):
    NST = 14
    e("""
.globl geglu_k2_kernel
.p2align 8
.type geglu_k2_kernel,@function
geglu_k2_kernel:
s_cmp_ge_u32 s2, 256
s_cbranch_scc1 L2_end
s_load_dwordx4 s[4:7], s[0:1], 24
s_load_dwordx2 s[30:31], s[0:1], 48
s_and_b32 s32, s2, 7
s_lshr_b32 s33, s2, 3
s_lshr_b32 s34, s32, 1
s_and_b32 s35, s32, 1
s_and_b32 s36, s33, 7
s_lshl_b32 s34, s34, 3
s_add_u32 s34, s34, s36
s_lshr_b32 s36, s33, 3
s_lshl_b32 s35, s35, 2
s_add_u32 s35, s35, s36
s_mul_i32 s37, s35, 160
s_lshl_b32 s38, s34, 6
v_lshrrev_b32 v1, 6, v0
v_and_b32 v2, 63, v0
s_nop 0
v_readfirstlane_b32 s40, v1
s_waitcnt lgkmcnt(0)
s_mov_b32 s8, s30
s_and_b32 s9, s31, 0xffff
s_mov_b32 s10, 7077888
s_mov_b32 s11, 0x00020000
s_mov_b32 s12, s4
s_and_b32 s13, s5, 0xffff
s_mov_b32 s14, 2211840
s_mov_b32 s15, 0x00020000
s_mov_b32 s20, s6
s_and_b32 s21, s7, 0xffff
s_mov_b32 s22, 2621440
s_mov_b32 s23, 0x00020000
s_cmp_ge_u32 s40, 4
s_cbranch_scc1 L2_loader
""")
    XA, XB, WA, WB, ACC = 16, 32, 48, 68, 88
    e("""
s_and_b32 s41, s40, 1
s_lshr_b32 s42, s40, 1
v_and_b32 v3, 15, v2
v_lshrrev_b32 v4, 4, v2
v_lshrrev_b32 v5, 1, v3
s_lshl_b32 s43, s42, 13
v_lshlrev_b32 v6, 7, v3
v_add_u32 v6, s43, v6
s_lshl_b32 s43, s41, 2
v_add_u32 v7, s43, v4
v_xor_b32 v7, v7, v5
v_lshlrev_b32 v7, 4, v7
v_add_u32 v8, v6, v7
""")
    e(f"""
v_add_u32 v9, {K2_BUF}, v8
v_add_u32 v10, {2*K2_BUF}, v8
v_add_u32 v11, {3*K2_BUF}, v8
v_lshrrev_b32 v5, 1, v4
v_lshlrev_b32 v5, 4, v5
v_and_b32 v6, 1, v4
v_lshl_add_u32 v5, v6, 2, v5
v_bfe_u32 v6, v2, 2, 2
v_add_u32 v5, v5, v6
v_mul_u32_u24 v5, 160, v5
v_and_b32 v6, 3, v2
v_lshl_add_u32 v5, v6, 3, v5
s_mul_i32 s43, s40, {32*160}
s_add_u32 s43, s43, 16384
v_add_u32 v12, s43, v5
v_add_u32 v13, {K2_BUF}, v12
v_add_u32 v14, {2*K2_BUF}, v12
v_add_u32 v15, {3*K2_BUF}, v12
v_mul_u32_u24 v3, {K2_EPITCH}, v3
v_lshl_add_u32 v3, v4, 4, v3
s_mul_i32 s43, s40, {K2_EW}
s_add_u32 s43, s43, {K2_EPI}
v_add_u32 v3, s43, v3
""")
    xaddr = ['v8','v9','v10','v11']
    waddr = ['v12','v13','v14','v15']
    for i in range(80):
        e(f"v_mov_b32 v{ACC+i}, 0")
    def reads(s, X, W):
        b = s % K2_NBUF
        r = []
        for rb in range(4):
            r.append(f"ds_read_b128 v[{X+4*rb}:{X+4*rb+3}], {xaddr[b]} offset:{rb*2048}")
        for cb in range(5):
            for h in range(2):
                off = 8*h*160 + 32*cb
                r.append(f"ds_read_b64_tr_b16 v[{W+4*cb+2*h}:{W+4*cb+2*h+1}], {waddr[b]} offset:{off}")
        return r
    def mfmas(X, W):
        m = []
        for cb in range(5):
            for rb in range(4):
                a = ACC + 4*(rb*5+cb)
                m.append(f"v_mfma_f32_16x16x32_bf16 v[{a}:{a+3}], v[{W+4*cb}:{W+4*cb+3}], v[{X+4*rb}:{X+4*rb+3}], v[{a}:{a+3}]")
        return m
    sets = [(XA,WA),(XB,WB)]
    e("s_barrier")
    for r in reads(0,*sets[0]): e(r)
    e("s_waitcnt lgkmcnt(0)")
    for s in range(1, NST):
        e("s_barrier")
        for x in interleave(mfmas(*sets[(s-1)%2]), reads(s,*sets[s%2]), lead=1): e(x)
        e("s_waitcnt lgkmcnt(0)")
    for m in mfmas(*sets[(NST-1)%2]): e(m)
    e("s_nop 7")
    for cb in range(5):
        for rb in range(4):
            a = ACC + 4*(rb*5+cb)
            e(f"ds_write_b128 v3, v[{a}:{a+3}] offset:{rb*16*K2_EPITCH + cb*64}")
    e("s_waitcnt lgkmcnt(0)")
    e("s_branch L2_epi")
    e("L2_loader:")
    e("""
s_sub_u32 s41, s40, 4
s_lshr_b32 s42, s41, 1
s_and_b32 s43, s41, 1
v_lshrrev_b32 v3, 3, v2
v_and_b32 v4, 7, v2
v_lshrrev_b32 v5, 4, v2
s_lshl_b32 s44, s43, 5
s_add_u32 s44, s44, s38
v_add_u32 v3, s44, v3
v_mov_b32 v6, 0xd80
v_mul_lo_u32 v3, v3, v6
s_lshl_b32 s44, s42, 7
v_add_u32 v3, s44, v3
v_xor_b32 v6, v4, v5
v_lshlrev_b32 v6, 4, v6
v_add_u32 v16, v3, v6
v_xor_b32 v6, 64, v6
v_add_u32 v17, v3, v6
v_add_u32 v17, 27648, v17
v_add_u32 v18, 55296, v16
v_add_u32 v19, 55296, v17
s_mul_i32 s44, s41, 320
""")
    for dd in range(5):
        e(f"""
v_add_u32 v3, {64*dd}, v2
v_add_u32 v3, s44, v3
v_mul_u32_u24 v4, 6554, v3
v_lshrrev_b32 v4, 16, v4
v_mul_u32_u24 v5, 10, v4
v_sub_u32 v5, v3, v5
v_and_b32 v6, 0x73, v4
v_bfe_u32 v7, v4, 2, 1
v_lshl_add_u32 v6, v7, 3, v6
v_bfe_u32 v7, v4, 3, 1
v_lshl_add_u32 v6, v7, 2, v6
v_mul_u32_u24 v6, 0x500, v6
v_lshl_add_u32 v6, v5, 4, v6
v_add_u32 v{20+dd}, s37, v6
""")
    e("""
s_lshl_b32 s45, s41, 12
s_mul_i32 s46, s41, 5120
s_add_u32 s46, s46, 16384
s_mov_b32 s47, 3328
s_cmp_ge_u32 s41, 2
s_cselect_b32 s47, 0x10000000, s47
""")
    def issue(s):
        b = s % K2_NBUF
        if s == NST-1:
            e("s_mov_b32 s48, s47")
        else:
            e(f"s_mov_b32 s48, {s*256}")
        e(f"s_mov_b32 s49, {s*163840}")
        for dd in range(4):
            e(f"s_add_u32 m0, s45, {b*K2_BUF + dd*1024}")
            e("s_nop 0")
            e(f"buffer_load_dwordx4 v{16+dd}, s[8:11], s48 offen lds")
        for dd in range(5):
            e(f"s_add_u32 m0, s46, {b*K2_BUF + dd*1024}")
            e("s_nop 0")
            e(f"buffer_load_dwordx4 v{20+dd}, s[12:15], s49 offen lds")
    for s in range(4): issue(s)
    for s in range(NST):
        issued = 3 if s == 0 else min(NST-1, s+2)
        n = 9*(issued - s)
        e(f"s_waitcnt vmcnt({n})")
        e("s_barrier")
        if s >= 1 and s+3 < NST: issue(s+3)
    e("L2_epi:")
    e("s_barrier")
    e("""
s_mul_i32 s44, s38, 1280
s_add_u32 s44, s44, s37
""")
    for it in range(3):
        r = 16 + it*24
        A = r; P = r+4
        if it == 2:
            e("s_cmp_ge_u32 s40, 4")
            e("s_cbranch_scc1 L2_fin")
        e(f"""
v_add_u32 v{A}, {512*it}, v0
v_mul_u32_u24 v{A+1}, 3277, v{A}
v_lshrrev_b32 v{A+1}, 16, v{A+1}
v_mul_u32_u24 v{A+2}, 20, v{A+1}
v_sub_u32 v{A+2}, v{A}, v{A+2}
v_mul_u32_u24 v{A}, {K2_EPITCH}, v{A+1}
v_lshl_add_u32 v{A}, v{A+2}, 4, v{A}
v_add_u32 v{A}, {K2_EPI}, v{A}
v_mul_u32_u24 v{A+1}, 0x500, v{A+1}
v_lshl_add_u32 v{A+1}, v{A+2}, 3, v{A+1}
ds_read_b128 v[{P}:{P+3}], v{A}
ds_read_b128 v[{P+4}:{P+7}], v{A} offset:{K2_EW}
ds_read_b128 v[{P+8}:{P+11}], v{A} offset:{2*K2_EW}
ds_read_b128 v[{P+12}:{P+15}], v{A} offset:{3*K2_EW}
s_waitcnt lgkmcnt(0)
v_pk_add_f32 v[{P}:{P+1}], v[{P}:{P+1}], v[{P+4}:{P+5}]
v_pk_add_f32 v[{P+2}:{P+3}], v[{P+2}:{P+3}], v[{P+6}:{P+7}]
v_pk_add_f32 v[{P+8}:{P+9}], v[{P+8}:{P+9}], v[{P+12}:{P+13}]
v_pk_add_f32 v[{P+10}:{P+11}], v[{P+10}:{P+11}], v[{P+14}:{P+15}]
v_pk_add_f32 v[{P}:{P+1}], v[{P}:{P+1}], v[{P+8}:{P+9}]
v_pk_add_f32 v[{P+2}:{P+3}], v[{P+2}:{P+3}], v[{P+10}:{P+11}]
v_cvt_pk_bf16_f32 v{P+16}, v{P}, v{P+1}
v_cvt_pk_bf16_f32 v{P+17}, v{P+2}, v{P+3}
buffer_store_dwordx2 v[{P+16}:{P+17}], v{A+1}, s[20:23], s44 offen
""")
    e("L2_fin:")
    e("L2_end:")
    e("s_endpgm")

def desc(name, vgpr):
    acc = (vgpr + 3)//4*4
    return f"""
.amdhsa_kernel {name}
  .amdhsa_next_free_vgpr {vgpr}
  .amdhsa_next_free_sgpr 64
  .amdhsa_accum_offset {acc}
  .amdhsa_group_segment_fixed_size 0
  .amdhsa_kernarg_size 56
  .amdhsa_user_sgpr_count 2
  .amdhsa_user_sgpr_kernarg_segment_ptr 1
  .amdhsa_system_sgpr_workgroup_id_x 1
.end_amdhsa_kernel
"""

def main():
    e = E()
    gen_k1(e)
    gen_k2(e)
    out = HDR % (K1_LDS, K2_LDS) + e.text()
    out += '.section .rodata,"a"\n.p2align 6' + desc('geglu_k1_kernel', 216)
    out += '.p2align 6' + desc('geglu_k2_kernel', 168)
    path = sys.argv[1] if len(sys.argv) > 1 else 'standalone__geglu_ffn__prompt.s'
    open(path, 'w').write(out)

main()
```

```python
import sys, os, struct
STAMP = int(os.environ.get('STAMP','0'))
NOPF = int(os.environ.get('NOPF','0'))
PRIO = int(os.environ.get('PRIO','0'))

HDR = """; Kernarg layout for this problem (56 bytes, ptrs only, base s[0:1]):
; @launch kernel=geglu_k1_kernel grid=(256,1,1) block=(512,1,1) lds=%d
; @launch kernel=geglu_k2_kernel grid=(256,1,1) block=(512,1,1) lds=%d
.amdgcn_target "amdgcn-amd-amdhsa--gfx950"
.text
"""

class E:
    def __init__(self):
        self.l = []
    def __call__(self, s):
        for x in s.strip('\n').split('\n'):
            x = x.strip()
            if not x: continue
            self.l.append(x if x.endswith(':') else '    ' + x)
    def text(self):
        return '\n'.join(self.l) + '\n'

class Stamps:
    def __init__(self, e, base=64):
        self.e = e; self.n = 0; self.base = base
    def st(self):
        if not STAMP: return
        if self.base + 2*self.n + 1 > 101: return
        self.e(f"s_memtime s[{self.base+2*self.n}:{self.base+2*self.n+1}]")
        self.n += 1
    def flush(self, lab, wave):
        if not STAMP: return
        e = self.e
        e(f"s_cmp_lg_u32 s2, {STAMP-1}")
        e(f"s_cbranch_scc1 {lab}")
        e(f"s_cmp_lg_u32 s40, {wave}")
        e(f"s_cbranch_scc1 {lab}")
        e("s_load_dwordx2 s[56:57], s[0:1], 40")
        e("s_waitcnt lgkmcnt(0)")
        e("s_and_b32 s57, s57, 0xffff")
        e("s_mov_b32 s58, 256")
        e("s_mov_b32 s59, 0x00020000")
        for i in range(self.n):
            e(f"s_sub_u32 s60, s{self.base+2*i}, s{self.base}")
            e(f"v_mov_b32 v14, s60")
            e(f"v_mov_b32 v15, {4*i}")
            e("buffer_store_dword v14, v15, s[56:59], 0 offen")
        e(f"{lab}:")

class VM:
    def __init__(self, e):
        self.e = e; self.ops = []
    def op(self, tag, text):
        self.e(text); self.ops.append(tag)
    def wait(self, tag):
        idx = [i for i, t in enumerate(self.ops) if t == tag]
        if not idx: return
        n = len(self.ops) - 1 - max(idx)
        assert n <= 63
        self.e(f"s_waitcnt vmcnt({n})")

def interleave(mf, rd, lead=0, every=1):
    out = []
    rd = list(rd)
    for _ in range(lead):
        if rd: out.append(rd.pop(0))
    for i, m in enumerate(mf):
        out.append(m)
        if (i % every) == every - 1 and rd:
            out.append(rd.pop(0))
    out.extend(rd)
    return out

C0 = -2.0 * 1.4426950408889634 * 0.7978845608028654
C1 = C0 * 0.044715
def f2u(f):
    return struct.unpack('<I', struct.pack('<f', f))[0]

WDP_OFF = 0x800000

K1_XB = 16384
K1_WB = 14336
K1_BUF = K1_XB + 2*K1_WB
K1_NBUF = 3
K1_LDS = K1_BUF * K1_NBUF
K1_NST = 10
K1_EPITCH = 240
K1_EMAT = 128 * K1_EPITCH
K1_EPI = K1_BUF

def gen_k1(e):
    NST, NB = K1_NST, K1_NBUF
    e(f"""
.globl geglu_k1_kernel
.p2align 8
.type geglu_k1_kernel,@function
geglu_k1_kernel:
s_cmp_ge_u32 s2, 256
s_cbranch_scc1 L1_end
s_load_dwordx4 s[4:7], s[0:1], 0
s_load_dwordx4 s[28:31], s[0:1], 16
s_load_dwordx2 s[52:53], s[0:1], 48
s_and_b32 s32, s2, 7
s_lshr_b32 s33, s2, 3
s_lshr_b32 s34, s32, 2
s_and_b32 s35, s32, 3
s_and_b32 s36, s33, 7
s_lshl_b32 s34, s34, 3
s_add_u32 s34, s34, s36
s_lshr_b32 s36, s33, 3
s_lshl_b32 s35, s35, 2
s_add_u32 s35, s35, s36
s_mul_i32 s36, s35, 27
s_lshr_b32 s36, s36, 2
s_lshl_b32 s37, s36, 5
s_lshl_b32 s38, s34, 7
v_lshrrev_b32 v1, 6, v0
v_and_b32 v2, 63, v0
s_nop 0
v_readfirstlane_b32 s40, v1
s_waitcnt lgkmcnt(0)
s_mov_b32 s8, s4
s_and_b32 s9, s5, 0xffff
s_mov_b32 s10, 2621440
s_mov_b32 s11, 0x00020000
s_mov_b32 s12, s6
s_and_b32 s13, s7, 0xffff
s_mov_b32 s14, 2211840
s_mov_b32 s15, 0x00020000
s_mov_b32 s16, s28
s_and_b32 s17, s29, 0xffff
s_mov_b32 s18, 2211840
s_mov_b32 s19, 0x00020000
s_mov_b32 s20, s52
s_and_b32 s21, s53, 0xffff
s_mov_b32 s22, 7077888
s_mov_b32 s23, 0x00020000
s_cmp_ge_u32 s40, 4
s_cbranch_scc1 L1_loader
""")
    XA, XB, WA, WB, ACC = 16, 32, 48, 76, 104
    if not NOPF:
        e("""
s_lshl_b32 s44, s2, 2
s_add_u32 s44, s44, s40
v_lshlrev_b32 v3, 7, v2
s_cmp_ge_u32 s44, 320
s_cbranch_scc1 L1_pf1
s_lshl_b32 s45, s44, 13
buffer_load_dword v240, v3, s[8:11], s45 offen
s_branch L1_pfd
L1_pf1:
s_cmp_ge_u32 s44, 590
s_cbranch_scc1 L1_pf2
s_sub_u32 s45, s44, 320
s_lshl_b32 s45, s45, 13
buffer_load_dword v240, v3, s[12:15], s45 offen
s_branch L1_pfd
L1_pf2:
s_sub_u32 s45, s44, 590
s_lshl_b32 s45, s45, 13
buffer_load_dword v240, v3, s[16:19], s45 offen
L1_pfd:
""")
    if PRIO: e(f"s_setprio {PRIO}")
    e("""
s_and_b32 s41, s40, 1
s_lshr_b32 s42, s40, 1
v_and_b32 v3, 15, v2
v_lshrrev_b32 v4, 4, v2
v_lshrrev_b32 v5, 1, v3
s_lshl_b32 s43, s41, 13
v_lshlrev_b32 v6, 7, v3
v_add_u32 v6, s43, v6
v_xor_b32 v7, v4, v5
v_lshlrev_b32 v7, 4, v7
v_add_u32 v8, v6, v7
v_xor_b32 v9, 64, v8
""")
    e(f"""
v_add_u32 v10, {K1_BUF}, v8
v_add_u32 v11, {K1_BUF}, v9
v_add_u32 v12, {2*K1_BUF}, v8
v_add_u32 v13, {2*K1_BUF}, v9
v_lshrrev_b32 v5, 1, v4
v_lshlrev_b32 v5, 4, v5
v_and_b32 v6, 1, v4
v_lshl_add_u32 v5, v6, 2, v5
v_bfe_u32 v6, v2, 2, 2
v_add_u32 v5, v5, v6
v_mul_u32_u24 v5, 224, v5
v_and_b32 v6, 3, v2
v_lshl_add_u32 v5, v6, 3, v5
s_mul_i32 s43, s42, {K1_WB}
s_add_u32 s43, s43, {K1_XB}
v_add_u32 v14, s43, v5
v_add_u32 v15, {K1_BUF}, v14
v_add_u32 v1, {2*K1_BUF}, v14
s_lshl_b32 s43, s41, 6
v_add_u32 v3, s43, v3
v_mul_u32_u24 v3, {K1_EPITCH}, v3
v_lshl_add_u32 v3, v4, 3, v3
s_mul_i32 s43, s42, {K1_EMAT}
s_add_u32 s43, s43, {K1_EPI}
v_add_u32 v3, s43, v3
""")
    xaddr = {(0,0):'v8',(0,1):'v9',(1,0):'v10',(1,1):'v11',(2,0):'v12',(2,1):'v13'}
    waddr = {0:'v14',1:'v15',2:'v1'}
    for i in range(112):
        e(f"v_mov_b32 v{ACC+i}, 0")
    def reads(s, ks, X, W):
        b = s % NB
        r = []
        for rb in range(4):
            r.append(f"ds_read_b128 v[{X+4*rb}:{X+4*rb+3}], {xaddr[(b,ks)]} offset:{rb*2048}")
        for cb in range(7):
            for h in range(2):
                off = (32*ks + 8*h)*224 + 32*cb
                r.append(f"ds_read_b64_tr_b16 v[{W+4*cb+2*h}:{W+4*cb+2*h+1}], {waddr[b]} offset:{off}")
        return r
    def mfmas(X, W):
        m = []
        for cb in range(7):
            for rb in range(4):
                a = ACC + 4*(rb*7+cb)
                m.append(f"v_mfma_f32_16x16x32_bf16 v[{a}:{a+3}], v[{W+4*cb}:{W+4*cb+3}], v[{X+4*rb}:{X+4*rb+3}], v[{a}:{a+3}]")
        return m
    e("s_barrier")
    for r in reads(0,0,XA,WA): e(r)
    for r in reads(0,1,XB,WB): e(r)
    e("s_waitcnt lgkmcnt(15)")
    for m in mfmas(XA,WA): e(m)
    e("s_waitcnt lgkmcnt(0)")
    for s in range(1, NST):
        e("s_barrier")
        for x in interleave(mfmas(XB,WB), reads(s,0,XA,WA), lead=1): e(x)
        e("s_waitcnt lgkmcnt(0)")
        for x in interleave(mfmas(XA,WA), reads(s,1,XB,WB), lead=1): e(x)
        e("s_waitcnt lgkmcnt(0)")
    for m in mfmas(XB,WB): e(m)
    e("s_nop 7")
    k = 0
    for cb in range(7):
        for rb in range(4):
            a = ACC + 4*(rb*7+cb)
            tt = 16 + 2*k; k += 1
            e(f"v_cvt_pk_bf16_f32 v{tt}, v{a}, v{a+1}")
            e(f"v_cvt_pk_bf16_f32 v{tt+1}, v{a+2}, v{a+3}")
            e(f"ds_write_b64 v3, v[{tt}:{tt+1}] offset:{rb*16*K1_EPITCH + cb*32}")
    e("s_waitcnt lgkmcnt(0)")
    e("s_branch L1_epi")
    e("L1_loader:")
    st = Stamps(e)
    st.st()
    e("""
s_sub_u32 s41, s40, 4
s_lshr_b32 s42, s41, 1
s_and_b32 s43, s41, 1
s_cmp_eq_u32 s42, 0
s_cselect_b32 s24, s12, s16
s_cselect_b32 s25, s13, s17
s_mov_b32 s26, 2211840
s_mov_b32 s27, 0x00020000
v_lshrrev_b32 v3, 3, v2
v_and_b32 v4, 7, v2
v_lshrrev_b32 v5, 4, v2
s_lshl_b32 s44, s41, 5
s_add_u32 s44, s44, s38
v_add_u32 v3, s44, v3
v_mov_b32 v6, 0x500
v_mul_lo_u32 v3, v3, v6
v_xor_b32 v6, v4, v5
v_lshlrev_b32 v6, 4, v6
v_add_u32 v16, v3, v6
v_xor_b32 v6, 64, v6
v_add_u32 v17, v3, v6
v_add_u32 v17, 10240, v17
v_add_u32 v18, 20480, v16
v_add_u32 v19, 20480, v17
s_mul_i32 s44, s43, 448
""")
    for dd in range(7):
        e(f"""
v_add_u32 v3, {64*dd}, v2
v_add_u32 v3, s44, v3
v_mul_u32_u24 v4, 4682, v3
v_lshrrev_b32 v4, 16, v4
v_mul_u32_u24 v5, 14, v4
v_sub_u32 v5, v3, v5
v_and_b32 v6, 0x33, v4
v_bfe_u32 v7, v4, 2, 1
v_lshl_add_u32 v6, v7, 3, v6
v_bfe_u32 v7, v4, 3, 1
v_lshl_add_u32 v6, v7, 2, v6
v_mul_u32_u24 v6, 0xd80, v6
v_lshl_add_u32 v6, v5, 4, v6
v_add_u32 v{20+dd}, s37, v6
""")
    e(f"""
s_lshl_b32 s45, s41, 12
s_mul_i32 s46, s42, {K1_WB}
s_mul_i32 s47, s43, 7168
s_add_u32 s46, s46, s47
s_add_u32 s46, s46, {K1_XB}
""")
    vm = VM(e)
    def issue(s):
        b = s % NB
        e(f"s_mov_b32 s48, {s*128}")
        e(f"s_mov_b32 s49, {s*221184}")
        for dd in range(4):
            e(f"s_add_u32 m0, s45, {b*K1_BUF + dd*1024}")
            e("s_nop 0")
            vm.op(('st',s), f"buffer_load_dwordx4 v{16+dd}, s[8:11], s48 offen lds")
        for dd in range(7):
            e(f"s_add_u32 m0, s46, {b*K1_BUF + dd*1024}")
            e("s_nop 0")
            vm.op(('st',s), f"buffer_load_dwordx4 v{20+dd}, s[24:27], s49 offen lds")
    def repack_setup():
        e(f"""
s_mov_b32 s60, s30
s_and_b32 s61, s31, 0xffff
s_mov_b32 s62, 2211840
s_mov_b32 s63, 0x00020000
s_add_u32 s56, s52, {WDP_OFF}
s_addc_u32 s57, s53, 0
s_and_b32 s57, s57, 0xffff
s_mov_b32 s58, 2211840
s_mov_b32 s59, 0x00020000
s_lshl_b32 s50, s2, 3
s_lshl_b32 s51, s41, 1
s_add_u32 s50, s50, s51
""")
        for i in range(3):
            e(f"""
v_add_u32 v3, {64*i}, v2
v_cmp_le_u32 vcc, 80, v3
s_nop 1
v_cndmask_b32 v4, 0, 1, vcc
v_mul_u32_u24 v5, 80, v4
v_sub_u32 v5, v3, v5
v_add_u32 v4, s50, v4
v_mul_u32_u24 v6, 0x500, v4
v_lshl_add_u32 v{30+i}, v5, 4, v6
v_mul_u32_u24 v6, 6554, v5
v_lshrrev_b32 v6, 16, v6
v_mul_u32_u24 v7, 10, v6
v_sub_u32 v7, v5, v7
v_mov_b32 v8, 276480
v_mul_lo_u32 v6, v6, v8
v_lshl_add_u32 v6, v7, 4, v6
v_and_b32 v7, 0xfffffff3, v4
v_bfe_u32 v8, v4, 2, 1
v_lshl_add_u32 v7, v8, 3, v7
v_bfe_u32 v8, v4, 3, 1
v_lshl_add_u32 v7, v8, 2, v7
v_mul_u32_u24 v7, 160, v7
v_add_u32 v{33+i}, v6, v7
""")
        e("""
v_cmp_le_u32 vcc, 32, v2
v_mov_b32 v3, 0x10000000
s_mov_b32 s51, 0
s_cmp_ge_u32 s2, 216
s_cselect_b32 s51, 0x10000000, s51
v_cndmask_b32 v32, v32, v3, vcc
v_cndmask_b32 v35, v35, v3, vcc
v_or_b32 v33, s51, v33
v_or_b32 v34, s51, v34
v_or_b32 v35, s51, v35
""")
    for s in range(3): issue(s)
    st.st()
    repack_setup()
    for s in range(NST):
        vm.wait(('st',s))
        e("s_barrier")
        st.st()
        if s >= 1 and s+2 < NST: issue(s+2)
        if s == 3:
            for i in range(3):
                vm.op('rp', f"buffer_load_dwordx4 v[{40+4*i}:{43+4*i}], v{30+i}, s[60:63], 0 offen")
        if s == 8:
            vm.wait('rp')
            for i in range(3):
                vm.op('rs', f"buffer_store_dwordx4 v[{40+4*i}:{43+4*i}], v{33+i}, s[56:59], 0 offen")
    e("L1_epi:")
    e(f"""
v_mul_u32_u24 v10, 4682, v0
v_lshrrev_b32 v10, 16, v10
v_mul_u32_u24 v11, 14, v10
v_sub_u32 v11, v0, v11
v_mul_u32_u24 v12, {K1_EPITCH}, v10
v_lshl_add_u32 v12, v11, 4, v12
v_add_u32 v12, {K1_EPI}, v12
v_mul_u32_u24 v13, 0xd80, v10
v_lshl_add_u32 v13, v11, 4, v13
v_mov_b32 v4, {hex(f2u(C0))}
v_mov_b32 v5, {hex(f2u(C0))}
v_mov_b32 v6, {hex(f2u(C1))}
v_mov_b32 v7, {hex(f2u(C1))}
v_mov_b32 v8, 1.0
v_mov_b32 v9, 1.0
s_mul_i32 s44, s38, 3456
s_add_u32 s44, s44, s37
s_barrier
""")
    st.st()
    if STAMP: e("s_waitcnt lgkmcnt(0)")
    e("s_cmp_ge_u32 s40, 7")
    e("s_cbranch_scc1 L1_fin")
    NIT = 4
    RB = 56
    for it in range(NIT):
        G = RB + it*8; U = G + 4
        e(f"ds_read_b128 v[{G}:{G+3}], v12 offset:{it*32*K1_EPITCH}")
        e(f"ds_read_b128 v[{U}:{U+3}], v12 offset:{K1_EMAT + it*32*K1_EPITCH}")
    TB = RB + NIT*8
    for it in range(NIT):
        G = RB + it*8; U = G + 4
        e(f"s_waitcnt lgkmcnt({2*(NIT-1-it)})")
        base = TB + it*28
        g = [base + 2*j for j in range(4)]
        u = [base + 8 + 2*j for j in range(4)]
        t = [base + 16 + 2*j for j in range(4)]
        o = base + 24
        for j in range(4):
            e(f"v_lshlrev_b32 v{g[j]}, 16, v{G+j}")
            e(f"v_and_b32 v{g[j]+1}, 0xffff0000, v{G+j}")
        for j in range(4):
            e(f"v_pk_mul_f32 v[{t[j]}:{t[j]+1}], v[{g[j]}:{g[j]+1}], v[{g[j]}:{g[j]+1}]")
        for j in range(4):
            e(f"v_pk_fma_f32 v[{t[j]}:{t[j]+1}], v[{t[j]}:{t[j]+1}], v[6:7], v[4:5]")
        for j in range(4):
            e(f"v_pk_mul_f32 v[{t[j]}:{t[j]+1}], v[{t[j]}:{t[j]+1}], v[{g[j]}:{g[j]+1}]")
        for j in range(4):
            e(f"v_exp_f32 v{t[j]}, v{t[j]}")
            e(f"v_exp_f32 v{t[j]+1}, v{t[j]+1}")
        for j in range(4):
            e(f"v_lshlrev_b32 v{u[j]}, 16, v{U+j}")
            e(f"v_and_b32 v{u[j]+1}, 0xffff0000, v{U+j}")
        for j in range(4):
            e(f"v_pk_add_f32 v[{t[j]}:{t[j]+1}], v[{t[j]}:{t[j]+1}], v[8:9]")
        for j in range(4):
            e(f"v_rcp_f32 v{t[j]}, v{t[j]}")
            e(f"v_rcp_f32 v{t[j]+1}, v{t[j]+1}")
        e("s_nop 0")
        for j in range(4):
            e(f"v_pk_mul_f32 v[{t[j]}:{t[j]+1}], v[{t[j]}:{t[j]+1}], v[{g[j]}:{g[j]+1}]")
        for j in range(4):
            e(f"v_cvt_pk_bf16_f32 v{g[j]}, v{t[j]}, v{t[j]+1}")
        for j in range(4):
            e(f"v_lshlrev_b32 v{t[j]}, 16, v{g[j]}")
            e(f"v_and_b32 v{t[j]+1}, 0xffff0000, v{g[j]}")
        for j in range(4):
            e(f"v_pk_mul_f32 v[{t[j]}:{t[j]+1}], v[{t[j]}:{t[j]+1}], v[{u[j]}:{u[j]+1}]")
        for j in range(4):
            e(f"v_cvt_pk_bf16_f32 v{o+j}, v{t[j]}, v{t[j]+1}")
        e(f"buffer_store_dwordx4 v[{o}:{o+3}], v13, s[20:23], s44 offen")
        if it < NIT-1:
            e(f"s_add_u32 s44, s44, {32*3456}")
    e("L1_fin:")
    if STAMP: e("s_waitcnt vmcnt(0)")
    st.st()
    if STAMP: e("s_waitcnt lgkmcnt(0)")
    st.flush("L1_nost", 4)
    e("L1_end:")
    e("s_endpgm")

K2_HB = 8192
K2_WB = 10240
K2_BUF = K2_HB + K2_WB
K2_NBUF = 8
K2_LDS = K2_BUF*K2_NBUF
K2_NST = 27

def gen_k2(e):
    NST, NB = K2_NST, K2_NBUF
    e(f"""
.globl geglu_k2_kernel
.p2align 8
.type geglu_k2_kernel,@function
geglu_k2_kernel:
s_cmp_ge_u32 s2, 256
s_cbranch_scc1 L2_end
s_load_dwordx2 s[6:7], s[0:1], 32
s_load_dwordx2 s[30:31], s[0:1], 48
s_and_b32 s32, s2, 7
s_lshr_b32 s33, s2, 3
s_lshr_b32 s34, s32, 1
s_and_b32 s35, s32, 1
s_and_b32 s36, s33, 7
s_lshl_b32 s34, s34, 3
s_add_u32 s34, s34, s36
s_lshr_b32 s36, s33, 3
s_lshl_b32 s35, s35, 2
s_add_u32 s35, s35, s36
s_mul_i32 s37, s35, 160
s_lshl_b32 s38, s34, 6
v_lshrrev_b32 v1, 6, v0
v_and_b32 v2, 63, v0
s_nop 0
v_readfirstlane_b32 s40, v1
s_waitcnt lgkmcnt(0)
s_mov_b32 s8, s30
s_and_b32 s9, s31, 0xffff
s_mov_b32 s10, 7077888
s_mov_b32 s11, 0x00020000
s_add_u32 s12, s30, {WDP_OFF}
s_addc_u32 s13, s31, 0
s_and_b32 s13, s13, 0xffff
s_mov_b32 s14, 2211840
s_mov_b32 s15, 0x00020000
s_mov_b32 s20, s6
s_and_b32 s21, s7, 0xffff
s_mov_b32 s22, 2621440
s_mov_b32 s23, 0x00020000
s_cmp_ge_u32 s40, 4
s_cbranch_scc1 L2_loader
""")
    SA, SB, ACC = 40, 88, 136
    XAD0, XAD1, WAD = 4, 12, 20
    if PRIO: e(f"s_setprio {PRIO}")
    e(f"""
v_and_b32 v30, 15, v2
v_lshrrev_b32 v31, 4, v2
v_lshrrev_b32 v32, 1, v30
v_xor_b32 v32, v31, v32
v_lshlrev_b32 v32, 4, v32
v_lshl_add_u32 v32, v30, 7, v32
s_lshl_b32 s43, s40, 11
v_add_u32 v{XAD0}, s43, v32
v_xor_b32 v{XAD1}, 64, v{XAD0}
v_lshrrev_b32 v33, 1, v31
v_lshlrev_b32 v33, 4, v33
v_and_b32 v34, 1, v31
v_lshl_add_u32 v33, v34, 2, v33
v_bfe_u32 v34, v2, 2, 2
v_add_u32 v33, v33, v34
v_mul_u32_u24 v33, 160, v33
v_and_b32 v34, 3, v2
v_lshl_add_u32 v33, v34, 3, v33
v_add_u32 v{WAD}, {K2_HB}, v33
""")
    for b in range(1, NB):
        e(f"v_add_u32 v{XAD0+b}, {b*K2_BUF}, v{XAD0}")
        e(f"v_add_u32 v{XAD1+b}, {b*K2_BUF}, v{XAD1}")
        e(f"v_add_u32 v{WAD+b}, {b*K2_BUF}, v{WAD}")
    e(f"""
s_lshl_b32 s43, s40, 4
v_add_u32 v3, s43, v30
v_mul_u32_u24 v3, 0x500, v3
v_lshl_add_u32 v3, v31, 3, v3
s_mul_i32 s44, s38, 1280
s_add_u32 s44, s44, s37
""")
    for i in range(20):
        e(f"v_mov_b32 v{ACC+i}, 0")
    def reads(s, S):
        b = s % NB
        r = []
        for ks in range(2):
            xa = (XAD0 if ks == 0 else XAD1) + b
            r.append(f"ds_read_b128 v[{S+4*ks}:{S+4*ks+3}], v{xa}")
            for cb in range(5):
                for h in range(2):
                    off = (32*ks + 8*h)*160 + 32*cb
                    w = S + 8 + 20*ks + 4*cb + 2*h
                    r.append(f"ds_read_b64_tr_b16 v[{w}:{w+1}], v{WAD+b} offset:{off}")
        return r
    def mfmas(S):
        m = []
        for ks in range(2):
            for cb in range(5):
                a = ACC + 4*cb
                w = S + 8 + 20*ks + 4*cb
                m.append(f"v_mfma_f32_16x16x32_bf16 v[{a}:{a+3}], v[{w}:{w+3}], v[{S+4*ks}:{S+4*ks+3}], v[{a}:{a+3}]")
        return m
    sets = [SA, SB]
    e("s_barrier")
    for r in reads(0, sets[0]): e(r)
    e("s_waitcnt lgkmcnt(0)")
    for s in range(1, NST):
        e("s_barrier")
        rd = reads(s, sets[s%2]); mf = mfmas(sets[(s-1)%2])
        o = []
        for i, m in enumerate(mf):
            o += rd[2*i:2*i+2]; o.append(m)
        o += rd[20:]
        for x in o: e(x)
        e("s_waitcnt lgkmcnt(0)")
    for m in mfmas(sets[(NST-1)%2]): e(m)
    e("s_nop 7")
    for cb in range(5):
        a = ACC + 4*cb
        e(f"v_cvt_pk_bf16_f32 v{40+2*cb}, v{a}, v{a+1}")
        e(f"v_cvt_pk_bf16_f32 v{41+2*cb}, v{a+2}, v{a+3}")
        e(f"buffer_store_dwordx2 v[{40+2*cb}:{41+2*cb}], v3, s[20:23], s44 offen offset:{32*cb}")
    e("s_branch L2_end")
    e("L2_loader:")
    st = Stamps(e)
    st.st()
    e(f"""
s_sub_u32 s41, s40, 4
s_lshr_b32 s42, s41, 1
s_and_b32 s43, s41, 1
v_lshrrev_b32 v3, 3, v2
v_and_b32 v4, 7, v2
v_lshrrev_b32 v5, 4, v2
s_lshl_b32 s44, s41, 4
s_add_u32 s44, s44, s38
v_add_u32 v3, s44, v3
v_mov_b32 v6, 0xd80
v_mul_lo_u32 v3, v3, v6
v_xor_b32 v6, v4, v5
v_lshlrev_b32 v6, 4, v6
v_add_u32 v16, v3, v6
v_xor_b32 v6, 64, v6
v_add_u32 v17, v3, v6
v_add_u32 v17, 27648, v17
s_mul_i32 s44, s42, 5120
s_mul_i32 s47, s43, 3072
s_add_u32 s44, s44, s47
s_mul_i32 s47, s35, 276480
s_add_u32 s47, s47, s44
v_lshlrev_b32 v20, 4, v2
v_add_u32 v20, s47, v20
v_add_u32 v21, 1024, v20
v_add_u32 v22, 2048, v20
s_lshl_b32 s45, s41, 11
s_add_u32 s46, s44, {K2_HB}
s_cmp_eq_u32 s43, 1
s_cbranch_scc1 L2_loader_odd
""")
    def loader(nw, stamps):
        vm = VM(e)
        def issue(s):
            b = s % NB
            e(f"s_mov_b32 s48, {s*128}")
            e(f"s_mov_b32 s49, {s*10240}")
            for dd in range(2):
                e(f"s_add_u32 m0, s45, {b*K2_BUF + dd*1024}")
                e("s_nop 0")
                vm.op(s, f"buffer_load_dwordx4 v{16+dd}, s[8:11], s48 offen lds")
            for dd in range(nw):
                e(f"s_add_u32 m0, s46, {b*K2_BUF + dd*1024}")
                e("s_nop 0")
                vm.op(s, f"buffer_load_dwordx4 v{20+dd}, s[12:15], s49 offen lds")
        for s in range(NB): issue(s)
        if stamps: st.st()
        for s in range(NST):
            vm.wait(s)
            e("s_barrier")
            if stamps and s % 2 == 0: st.st()
            if s >= 1 and s+NB-1 < NST: issue(s+NB-1)
    loader(3, True)
    if STAMP: e("s_waitcnt lgkmcnt(0)")
    st.flush("L2_nost", 4)
    e("s_branch L2_end")
    e("L2_loader_odd:")
    loader(2, False)
    e("L2_end:")
    e("s_endpgm")

def desc(name, vgpr):
    acc = (vgpr + 3)//4*4
    return f"""
.amdhsa_kernel {name}
  .amdhsa_next_free_vgpr {vgpr}
  .amdhsa_next_free_sgpr 102
  .amdhsa_accum_offset {acc}
  .amdhsa_group_segment_fixed_size 0
  .amdhsa_kernarg_size 56
  .amdhsa_user_sgpr_count 2
  .amdhsa_user_sgpr_kernarg_segment_ptr 1
  .amdhsa_system_sgpr_workgroup_id_x 1
.end_amdhsa_kernel
"""

def main():
    e = E()
    gen_k1(e)
    gen_k2(e)
    out = HDR % (K1_LDS, K2_LDS) + e.text()
    out += '.section .rodata,"a"\n.p2align 6' + desc('geglu_k1_kernel', 248)
    out += '.p2align 6' + desc('geglu_k2_kernel', 160)
    path = sys.argv[1] if len(sys.argv) > 1 else 'standalone__geglu_ffn__prompt.s'
    open(path, 'w').write(out)

main()
```

```python
import sys, os, struct
STAMP = int(os.environ.get('STAMP','0'))
NOPF = int(os.environ.get('NOPF','0'))
PRIO = int(os.environ.get('PRIO','0'))
STPOL = os.environ.get('STPOL','sc1')
ROT = int(os.environ.get('ROT','0'))
K2LA = int(os.environ.get('K2LA','0'))

HDR = """; Kernarg layout for this problem (56 bytes, ptrs only, base s[0:1]):
; @launch kernel=geglu_k1_kernel grid=(256,1,1) block=(512,1,1) lds=%d
; @launch kernel=geglu_k2_kernel grid=(256,1,1) block=(512,1,1) lds=%d
.amdgcn_target "amdgcn-amd-amdhsa--gfx950"
.text
"""

class E:
    def __init__(self):
        self.l = []
    def __call__(self, s):
        for x in s.strip('\n').split('\n'):
            x = x.strip()
            if not x: continue
            self.l.append(x if x.endswith(':') else '    ' + x)
    def text(self):
        return '\n'.join(self.l) + '\n'

class Stamps:
    def __init__(self, e, base=64):
        self.e = e; self.n = 0; self.base = base
    def st(self):
        if not STAMP: return
        if self.base + 2*self.n + 1 > 97: return
        self.e(f"s_memtime s[{self.base+2*self.n}:{self.base+2*self.n+1}]")
        self.n += 1
    def rt(self, idx):
        if not STAMP: return
        self.e(f"s_memrealtime s[{98+2*idx}:{99+2*idx}]")
    def flush(self, lab, wave):
        if not STAMP: return
        e = self.e
        e(f"s_cmp_lg_u32 s2, {STAMP-1}")
        e(f"s_cbranch_scc1 {lab}")
        e(f"s_cmp_lg_u32 s40, {wave}")
        e(f"s_cbranch_scc1 {lab}")
        e("s_load_dwordx2 s[56:57], s[0:1], 40")
        e("s_waitcnt lgkmcnt(0)")
        e("s_and_b32 s57, s57, 0xffff")
        e("s_mov_b32 s58, 256")
        e("s_mov_b32 s59, 0x00020000")
        for i in range(self.n):
            e(f"s_sub_u32 s60, s{self.base+2*i}, s{self.base}")
            e(f"v_mov_b32 v14, s60")
            e(f"v_mov_b32 v15, {4*i}")
            e("buffer_store_dword v14, v15, s[56:59], 0 offen")
        for i in range(2):
            e(f"v_mov_b32 v14, s{98+2*i}")
            e(f"v_mov_b32 v15, {160+4*i}")
            e("buffer_store_dword v14, v15, s[56:59], 0 offen")
        e(f"{lab}:")

class VM:
    def __init__(self, e):
        self.e = e; self.ops = []
    def op(self, tag, text):
        self.e(text); self.ops.append(tag)
    def wait(self, tag):
        idx = [i for i, t in enumerate(self.ops) if t == tag]
        if not idx: return
        n = len(self.ops) - 1 - max(idx)
        assert n <= 63
        self.e(f"s_waitcnt vmcnt({n})")

def interleave(mf, rd, lead=0, every=1):
    out = []
    rd = list(rd)
    for _ in range(lead):
        if rd: out.append(rd.pop(0))
    for i, m in enumerate(mf):
        out.append(m)
        if (i % every) == every - 1 and rd:
            out.append(rd.pop(0))
    out.extend(rd)
    return out

C0 = -2.0 * 1.4426950408889634 * 0.7978845608028654
C1 = C0 * 0.044715
def f2u(f):
    return struct.unpack('<I', struct.pack('<f', f))[0]

WDP_OFF = 0x800000

K1_XB = 16384
K1_WB = 14336
K1_BUF = K1_XB + 2*K1_WB
K1_NBUF = 3
K1_LDS = K1_BUF * K1_NBUF
K1_NST = 10
K1_EPITCH = 240
K1_EMAT = 128 * K1_EPITCH
K1_EPI = K1_BUF

def pf_late(e, wreg, vm=None):
    e(f"""
s_lshl_b32 s50, s2, 2
s_add_u32 s50, s50, {wreg}
v_lshlrev_b32 v36, 7, v2
s_mov_b32 s60, s8
s_mov_b32 s61, s9
s_mov_b32 s62, s10
s_lshl_b32 s51, s50, 13
s_cmp_lt_u32 s50, 320
s_cbranch_scc1 L1_plg
s_mov_b32 s60, s12
s_mov_b32 s61, s13
s_mov_b32 s62, s14
s_sub_u32 s51, s50, 239
s_lshl_b32 s51, s51, 13
s_cmp_lt_u32 s50, 509
s_cbranch_scc1 L1_plg
s_mov_b32 s60, s16
s_mov_b32 s61, s17
s_sub_u32 s51, s50, 428
s_lshl_b32 s51, s51, 13
L1_plg:
s_mov_b32 s63, 0x00020000
""")
    txt = "buffer_load_dword v240, v36, s[60:63], s51 offen"
    if vm: vm.op('pf', txt)
    else: e(txt)

def gen_k1(e):
    NST, NB = K1_NST, K1_NBUF
    e(f"""
.globl geglu_k1_kernel
.p2align 8
.type geglu_k1_kernel,@function
geglu_k1_kernel:
s_cmp_ge_u32 s2, 256
s_cbranch_scc1 L1_end
s_load_dwordx4 s[4:7], s[0:1], 0
s_load_dwordx4 s[28:31], s[0:1], 16
s_load_dwordx2 s[52:53], s[0:1], 48
s_and_b32 s32, s2, 7
s_lshr_b32 s33, s2, 3
s_lshr_b32 s34, s32, 2
s_and_b32 s35, s32, 3
s_and_b32 s36, s33, 7
s_lshl_b32 s34, s34, 3
s_add_u32 s34, s34, s36
s_lshr_b32 s36, s33, 3
s_lshl_b32 s35, s35, 2
s_add_u32 s35, s35, s36
s_mul_i32 s36, s35, 27
s_lshr_b32 s36, s36, 2
s_lshl_b32 s37, s36, 5
s_lshl_b32 s38, s34, 7
v_lshrrev_b32 v1, 6, v0
v_and_b32 v2, 63, v0
s_nop 0
v_readfirstlane_b32 s40, v1
s_waitcnt lgkmcnt(0)
s_mov_b32 s8, s4
s_and_b32 s9, s5, 0xffff
s_mov_b32 s10, 2621440
s_mov_b32 s11, 0x00020000
s_mov_b32 s12, s6
s_and_b32 s13, s7, 0xffff
s_mov_b32 s14, 2211840
s_mov_b32 s15, 0x00020000
s_mov_b32 s16, s28
s_and_b32 s17, s29, 0xffff
s_mov_b32 s18, 2211840
s_mov_b32 s19, 0x00020000
s_mov_b32 s20, s52
s_and_b32 s21, s53, 0xffff
s_mov_b32 s22, 7077888
s_mov_b32 s23, 0x00020000
s_cmp_ge_u32 s40, 4
s_cbranch_scc1 L1_loader
""")
    XA, XB, WA, WB, ACC = 16, 32, 48, 76, 104
    LA = 99
    PFM = int(os.environ.get('PFM','1'))
    if not NOPF and PFM == 1:
        e("""
s_lshl_b32 s44, s2, 2
s_add_u32 s44, s44, s40
v_lshlrev_b32 v3, 7, v2
s_cmp_ge_u32 s44, 320
s_cbranch_scc1 L1_pf1
s_lshl_b32 s45, s44, 13
buffer_load_dword v240, v3, s[8:11], s45 offen
s_branch L1_pfd
L1_pf1:
s_cmp_ge_u32 s44, 590
s_cbranch_scc1 L1_pf2
s_sub_u32 s45, s44, 320
s_lshl_b32 s45, s45, 13
buffer_load_dword v240, v3, s[12:15], s45 offen
s_branch L1_pfd
L1_pf2:
s_sub_u32 s45, s44, 590
s_lshl_b32 s45, s45, 13
buffer_load_dword v240, v3, s[16:19], s45 offen
L1_pfd:
""")
    if not NOPF and PFM == 3:
        e("""
s_lshl_b32 s44, s2, 2
s_add_u32 s44, s44, s40
v_lshlrev_b32 v3, 4, v2
s_mul_i32 s45, s44, 2560
s_mul_i32 s46, s44, 2160
buffer_load_dwordx4 v[240:243], v3, s[8:11], s45 offen
buffer_load_dwordx4 v[240:243], v3, s[12:15], s46 offen
buffer_load_dwordx4 v[240:243], v3, s[16:19], s46 offen
buffer_load_dwordx4 v[240:243], v3, s[8:11], s45 offen offset:1024
buffer_load_dwordx4 v[240:243], v3, s[12:15], s46 offen offset:1024
buffer_load_dwordx4 v[240:243], v3, s[16:19], s46 offen offset:1024
buffer_load_dwordx4 v[240:243], v3, s[8:11], s45 offen offset:1536
buffer_load_dwordx4 v[240:243], v3, s[12:15], s46 offen offset:1136
buffer_load_dwordx4 v[240:243], v3, s[16:19], s46 offen offset:1136
""")
    if not NOPF and PFM in (4,5):
        e("""
s_lshl_b32 s44, s2, 2
s_add_u32 s44, s44, s40
v_lshlrev_b32 v3, 7, v2
s_cmp_ge_u32 s44, 320
s_cbranch_scc1 L1_pf1
s_lshl_b32 s45, s44, 13
""")
        if PFM == 4: e("buffer_load_dword v240, v3, s[8:11], s45 offen")
        e("""
s_branch L1_pfd
L1_pf1:
s_cmp_ge_u32 s44, 590
s_cbranch_scc1 L1_pf2
s_sub_u32 s45, s44, 320
s_lshl_b32 s45, s45, 13
""")
        if PFM == 5: e("buffer_load_dword v240, v3, s[12:15], s45 offen")
        e("""
s_branch L1_pfd
L1_pf2:
s_sub_u32 s45, s44, 590
s_lshl_b32 s45, s45, 13
""")
        if PFM == 5: e("buffer_load_dword v240, v3, s[16:19], s45 offen")
        e("L1_pfd:")
    if not NOPF and PFM == 2:
        E1 = int(os.environ.get('E1','81'))
        L1 = 270 - E1
        e(f"""
s_lshl_b32 s44, s2, 2
s_add_u32 s44, s44, s40
v_lshlrev_b32 v3, 7, v2
s_cmp_ge_u32 s44, 320
s_cbranch_scc1 L1_pf1
s_lshl_b32 s45, s44, 13
buffer_load_dword v240, v3, s[8:11], s45 offen
s_branch L1_pfd
L1_pf1:
s_cmp_ge_u32 s44, {320+E1}
s_cbranch_scc1 L1_pf2
s_sub_u32 s45, s44, 320
s_lshl_b32 s45, s45, 13
buffer_load_dword v240, v3, s[12:15], s45 offen
s_branch L1_pfd
L1_pf2:
s_cmp_ge_u32 s44, {320+2*E1}
s_cbranch_scc1 L1_pfe
s_sub_u32 s45, s44, {320+E1}
s_lshl_b32 s45, s45, 13
buffer_load_dword v240, v3, s[16:19], s45 offen
L1_pfd:
s_waitcnt vmcnt(0)
s_cmp_ge_u32 s44, {L1}
s_cbranch_scc1 L1_pf3
s_add_u32 s45, s44, {E1}
s_lshl_b32 s45, s45, 13
buffer_load_dword v240, v3, s[12:15], s45 offen
s_branch L1_pfe
L1_pf3:
s_cmp_ge_u32 s44, {2*L1}
s_cbranch_scc1 L1_pfe
s_sub_u32 s45, s44, {L1-E1}
s_lshl_b32 s45, s45, 13
buffer_load_dword v240, v3, s[16:19], s45 offen
L1_pfe:
""")
    def touch(): return []
    if PRIO: e(f"s_setprio {PRIO}")
    e("""
s_and_b32 s41, s40, 1
s_lshr_b32 s42, s40, 1
v_and_b32 v3, 15, v2
v_lshrrev_b32 v4, 4, v2
v_lshrrev_b32 v5, 1, v3
s_lshl_b32 s43, s41, 13
v_lshlrev_b32 v6, 7, v3
v_add_u32 v6, s43, v6
v_xor_b32 v7, v4, v5
v_lshlrev_b32 v7, 4, v7
v_add_u32 v8, v6, v7
v_xor_b32 v9, 64, v8
""")
    e(f"""
v_add_u32 v10, {K1_BUF}, v8
v_add_u32 v11, {K1_BUF}, v9
v_add_u32 v12, {2*K1_BUF}, v8
v_add_u32 v13, {2*K1_BUF}, v9
v_lshrrev_b32 v5, 1, v4
v_lshlrev_b32 v5, 4, v5
v_and_b32 v6, 1, v4
v_lshl_add_u32 v5, v6, 2, v5
v_bfe_u32 v6, v2, 2, 2
v_add_u32 v5, v5, v6
v_mul_u32_u24 v5, 224, v5
v_and_b32 v6, 3, v2
v_lshl_add_u32 v5, v6, 3, v5
s_mul_i32 s43, s42, {K1_WB}
s_add_u32 s43, s43, {K1_XB}
v_add_u32 v14, s43, v5
v_add_u32 v15, {K1_BUF}, v14
v_add_u32 v1, {2*K1_BUF}, v14
s_lshl_b32 s43, s41, 6
v_add_u32 v3, s43, v3
v_mul_u32_u24 v3, {K1_EPITCH}, v3
v_lshl_add_u32 v3, v4, 3, v3
s_mul_i32 s43, s42, {K1_EMAT}
s_add_u32 s43, s43, {K1_EPI}
v_add_u32 v3, s43, v3
""")
    xaddr = {(0,0):'v8',(0,1):'v9',(1,0):'v10',(1,1):'v11',(2,0):'v12',(2,1):'v13'}
    waddr = {0:'v14',1:'v15',2:'v1'}
    for i in range(112):
        e(f"v_mov_b32 v{ACC+i}, 0")
    def reads(s, ks, X, W):
        b = s % NB
        r = []
        for rb in range(4):
            r.append(f"ds_read_b128 v[{X+4*rb}:{X+4*rb+3}], {xaddr[(b,ks)]} offset:{rb*2048}")
        for cb in range(7):
            for h in range(2):
                off = (32*ks + 8*h)*224 + 32*cb
                r.append(f"ds_read_b64_tr_b16 v[{W+4*cb+2*h}:{W+4*cb+2*h+1}], {waddr[b]} offset:{off}")
        return r
    def mfmas(X, W):
        m = []
        for cb in range(7):
            for rb in range(4):
                a = ACC + 4*(rb*7+cb)
                m.append(f"v_mfma_f32_16x16x32_bf16 v[{a}:{a+3}], v[{W+4*cb}:{W+4*cb+3}], v[{X+4*rb}:{X+4*rb+3}], v[{a}:{a+3}]")
        return m
    e("s_barrier")
    if not NOPF and PFM == 7: pf_late(e, 's40')
    for r in reads(0,0,XA,WA): e(r)
    for r in reads(0,1,XB,WB): e(r)
    e("s_waitcnt lgkmcnt(15)")
    for m in mfmas(XA,WA): e(m)
    e("s_waitcnt lgkmcnt(0)")
    for s in range(1, NST):
        e("s_barrier")
        if s + LA < NST:
            for t in touch(): e(t)
        for x in interleave(mfmas(XB,WB), reads(s,0,XA,WA), lead=1): e(x)
        e("s_waitcnt lgkmcnt(0)")
        for x in interleave(mfmas(XA,WA), reads(s,1,XB,WB), lead=1): e(x)
        e("s_waitcnt lgkmcnt(0)")
    tmps = [16+2*i for i in range(8)] + [48+2*i for i in range(14)]
    def cw(i):
        cb, rb = i//4, i%4
        a = ACC + 4*(rb*7+cb)
        tt = tmps[i % len(tmps)]
        e(f"v_cvt_pk_bf16_f32 v{tt}, v{a}, v{a+1}")
        e(f"v_cvt_pk_bf16_f32 v{tt+1}, v{a+2}, v{a+3}")
        e(f"ds_write_b64 v3, v[{tt}:{tt+1}] offset:{rb*16*K1_EPITCH + cb*32}")
    LAG = 8
    for i, m in enumerate(mfmas(XB,WB)):
        e(m)
        if i >= LAG: cw(i-LAG)
    e("s_nop 7")
    for i in range(28-LAG, 28): cw(i)
    e("s_waitcnt lgkmcnt(0)")
    e("s_branch L1_epi")
    e("L1_loader:")
    st = Stamps(e)
    st.rt(0)
    st.st()
    e("""
s_sub_u32 s41, s40, 4
s_lshr_b32 s42, s41, 1
s_and_b32 s43, s41, 1
s_cmp_eq_u32 s42, 0
s_cselect_b32 s24, s12, s16
s_cselect_b32 s25, s13, s17
s_mov_b32 s26, 2211840
s_mov_b32 s27, 0x00020000
v_lshrrev_b32 v3, 3, v2
v_and_b32 v4, 7, v2
v_lshrrev_b32 v5, 4, v2
s_lshl_b32 s44, s41, 5
s_add_u32 s44, s44, s38
v_add_u32 v3, s44, v3
v_mov_b32 v6, 0x500
v_mul_lo_u32 v3, v3, v6
v_xor_b32 v6, v4, v5
v_lshlrev_b32 v6, 4, v6
v_add_u32 v16, v3, v6
v_xor_b32 v6, 64, v6
v_add_u32 v17, v3, v6
v_add_u32 v17, 10240, v17
v_add_u32 v18, 20480, v16
v_add_u32 v19, 20480, v17
s_mul_i32 s44, s43, 448
""")
    for dd in range(7):
        e(f"""
v_add_u32 v3, {64*dd}, v2
v_add_u32 v3, s44, v3
v_mul_u32_u24 v4, 4682, v3
v_lshrrev_b32 v4, 16, v4
v_mul_u32_u24 v5, 14, v4
v_sub_u32 v5, v3, v5
v_and_b32 v6, 0x33, v4
v_bfe_u32 v7, v4, 2, 1
v_lshl_add_u32 v6, v7, 3, v6
v_bfe_u32 v7, v4, 3, 1
v_lshl_add_u32 v6, v7, 2, v6
v_mul_u32_u24 v6, 0xd80, v6
v_lshl_add_u32 v6, v5, 4, v6
v_add_u32 v{20+dd}, s37, v6
""")
    e(f"""
s_lshl_b32 s45, s41, 12
s_mul_i32 s46, s42, {K1_WB}
s_mul_i32 s47, s43, 7168
s_add_u32 s46, s46, s47
s_add_u32 s46, s46, {K1_XB}
""")
    vm = VM(e)
    if ROT:
        e("""
s_and_b32 s54, s33, 7
s_lshr_b32 s55, s33, 3
s_mul_i32 s55, s55, 3
s_add_u32 s54, s54, s55
s_sub_u32 s55, s54, 10
s_cmp_ge_u32 s54, 10
s_cselect_b32 s54, s55, s54
""")
    def issue(s):
        b = s % NB
        if ROT:
            e("s_lshl_b32 s48, s54, 7")
            e("s_mul_i32 s49, s54, 221184")
            e("s_add_u32 s54, s54, 1")
            e("s_cmp_ge_u32 s54, 10")
            e("s_cselect_b32 s54, 0, s54")
        else:
            e(f"s_mov_b32 s48, {s*128}")
            e(f"s_mov_b32 s49, {s*221184}")
        for dd in range(4):
            e(f"s_add_u32 m0, s45, {b*K1_BUF + dd*1024}")
            e("s_nop 0")
            vm.op(('st',s), f"buffer_load_dwordx4 v{16+dd}, s[8:11], s48 offen lds")
        for dd in range(7):
            e(f"s_add_u32 m0, s46, {b*K1_BUF + dd*1024}")
            e("s_nop 0")
            vm.op(('st',s), f"buffer_load_dwordx4 v{20+dd}, s[24:27], s49 offen lds")
    def repack_setup():
        e(f"""
s_mov_b32 s60, s30
s_and_b32 s61, s31, 0xffff
s_mov_b32 s62, 2211840
s_mov_b32 s63, 0x00020000
s_add_u32 s56, s52, {WDP_OFF}
s_addc_u32 s57, s53, 0
s_and_b32 s57, s57, 0xffff
s_mov_b32 s58, 2211840
s_mov_b32 s59, 0x00020000
s_lshl_b32 s50, s2, 3
s_lshl_b32 s51, s41, 1
s_add_u32 s50, s50, s51
""")
        for i in range(3):
            e(f"""
v_add_u32 v3, {64*i}, v2
v_cmp_le_u32 vcc, 80, v3
s_nop 1
v_cndmask_b32 v4, 0, 1, vcc
v_mul_u32_u24 v5, 80, v4
v_sub_u32 v5, v3, v5
v_add_u32 v4, s50, v4
v_mul_u32_u24 v6, 0x500, v4
v_lshl_add_u32 v{30+i}, v5, 4, v6
v_mul_u32_u24 v6, 6554, v5
v_lshrrev_b32 v6, 16, v6
v_mul_u32_u24 v7, 10, v6
v_sub_u32 v7, v5, v7
v_mov_b32 v8, 276480
v_mul_lo_u32 v6, v6, v8
v_lshl_add_u32 v6, v7, 4, v6
v_and_b32 v7, 0xfffffff3, v4
v_bfe_u32 v8, v4, 2, 1
v_lshl_add_u32 v7, v8, 3, v7
v_bfe_u32 v8, v4, 3, 1
v_lshl_add_u32 v7, v8, 2, v7
v_mul_u32_u24 v7, 160, v7
v_add_u32 v{33+i}, v6, v7
""")
        e("""
v_cmp_le_u32 vcc, 32, v2
v_mov_b32 v3, 0x10000000
s_mov_b32 s51, 0
s_cmp_ge_u32 s2, 216
s_cselect_b32 s51, 0x10000000, s51
v_cndmask_b32 v32, v32, v3, vcc
v_cndmask_b32 v35, v35, v3, vcc
v_or_b32 v33, s51, v33
v_or_b32 v34, s51, v34
v_or_b32 v35, s51, v35
""")
    NPRE = int(os.environ.get('NPRE','1'))
    for s in range(NPRE): issue(s)
    if not NOPF and PFM == 6:
        pf_late(e, 's41', vm)
    st.st()
    repack_setup()
    for s in range(NST):
        vm.wait(('st',s))
        e("s_barrier")
        st.st()
        if s == 0:
            for t in range(NPRE, 2): issue(t)
        if s+2 < NST and s+2 >= NPRE: issue(s+2)
        if s == 3:
            for i in range(3):
                vm.op('rp', f"buffer_load_dwordx4 v[{40+4*i}:{43+4*i}], v{30+i}, s[60:63], 0 offen")
        if s == 8:
            vm.wait('rp')
            for i in range(3):
                vm.op('rs', f"buffer_store_dwordx4 v[{40+4*i}:{43+4*i}], v{33+i}, s[56:59], 0 offen {STPOL}")
    e("L1_epi:")
    e(f"""
v_mul_u32_u24 v10, 4682, v0
v_lshrrev_b32 v10, 16, v10
v_mul_u32_u24 v11, 14, v10
v_sub_u32 v11, v0, v11
v_mul_u32_u24 v12, {K1_EPITCH}, v10
v_lshl_add_u32 v12, v11, 4, v12
v_add_u32 v12, {K1_EPI}, v12
v_mul_u32_u24 v13, 0xd80, v10
v_lshl_add_u32 v13, v11, 4, v13
v_mov_b32 v4, {hex(f2u(C0))}
v_mov_b32 v5, {hex(f2u(C0))}
v_mov_b32 v6, {hex(f2u(C1))}
v_mov_b32 v7, {hex(f2u(C1))}
v_mov_b32 v8, 1.0
v_mov_b32 v9, 1.0
s_mul_i32 s44, s38, 3456
s_add_u32 s44, s44, s37
s_barrier
""")
    st.st()
    if STAMP: e("s_waitcnt lgkmcnt(0)")
    e("s_cmp_ge_u32 s40, 7")
    e("s_cbranch_scc1 L1_fin")
    NIT = 4
    RB = 56
    for it in range(NIT):
        G = RB + it*8; U = G + 4
        e(f"ds_read_b128 v[{G}:{G+3}], v12 offset:{it*32*K1_EPITCH}")
        e(f"ds_read_b128 v[{U}:{U+3}], v12 offset:{K1_EMAT + it*32*K1_EPITCH}")
    TB = RB + NIT*8
    P = [(it, j) for it in range(NIT) for j in range(4)]
    def g(p): return TB + 6*(p[0]*4+p[1])
    def u(p): return g(p) + 2
    def t(p): return g(p) + 4
    OB = TB + 96
    def G(p): return RB + p[0]*8 + p[1]
    def U(p): return RB + p[0]*8 + 4 + p[1]
    e("s_waitcnt lgkmcnt(0)")
    for p in P:
        e(f"v_lshlrev_b32 v{g(p)}, 16, v{G(p)}")
        e(f"v_and_b32 v{g(p)+1}, 0xffff0000, v{G(p)}")
    for p in P: e(f"v_pk_mul_f32 v[{t(p)}:{t(p)+1}], v[{g(p)}:{g(p)+1}], v[{g(p)}:{g(p)+1}]")
    for p in P: e(f"v_pk_fma_f32 v[{t(p)}:{t(p)+1}], v[{t(p)}:{t(p)+1}], v[6:7], v[4:5]")
    for p in P: e(f"v_pk_mul_f32 v[{t(p)}:{t(p)+1}], v[{t(p)}:{t(p)+1}], v[{g(p)}:{g(p)+1}]")
    for p in P:
        e(f"v_exp_f32 v{t(p)}, v{t(p)}")
        e(f"v_lshlrev_b32 v{u(p)}, 16, v{U(p)}")
        e(f"v_exp_f32 v{t(p)+1}, v{t(p)+1}")
        e(f"v_and_b32 v{u(p)+1}, 0xffff0000, v{U(p)}")
    for p in P: e(f"v_pk_add_f32 v[{t(p)}:{t(p)+1}], v[{t(p)}:{t(p)+1}], v[8:9]")
    for p in P:
        e(f"v_rcp_f32 v{t(p)}, v{t(p)}")
        e(f"v_rcp_f32 v{t(p)+1}, v{t(p)+1}")
    e("s_nop 0")
    for p in P: e(f"v_pk_mul_f32 v[{t(p)}:{t(p)+1}], v[{t(p)}:{t(p)+1}], v[{g(p)}:{g(p)+1}]")
    for p in P: e(f"v_cvt_pk_bf16_f32 v{g(p)}, v{t(p)}, v{t(p)+1}")
    for p in P:
        e(f"v_lshlrev_b32 v{t(p)}, 16, v{g(p)}")
        e(f"v_and_b32 v{t(p)+1}, 0xffff0000, v{g(p)}")
    for p in P: e(f"v_pk_mul_f32 v[{t(p)}:{t(p)+1}], v[{t(p)}:{t(p)+1}], v[{u(p)}:{u(p)+1}]")
    for it in range(NIT):
        for j in range(4):
            p = (it, j)
            e(f"v_cvt_pk_bf16_f32 v{OB+4*it+j}, v{t(p)}, v{t(p)+1}")
        e(f"buffer_store_dwordx4 v[{OB+4*it}:{OB+4*it+3}], v13, s[20:23], s44 offen {STPOL}")
        if it < NIT-1:
            e(f"s_add_u32 s44, s44, {32*3456}")
    e("L1_fin:")
    st.st()
    if STAMP: e("s_waitcnt vmcnt(0)")
    st.st()
    st.rt(1)
    if STAMP: e("s_waitcnt lgkmcnt(0)")
    st.flush("L1_nost", 4)
    e("L1_end:")
    e("s_endpgm")

K2_HB = 8192
K2_WB = 10240
K2_BUF = K2_HB + K2_WB
K2_NBUF = 8
K2_LDS = K2_BUF*K2_NBUF
K2_NST = 27

def gen_k2(e):
    NST, NB = K2_NST, K2_NBUF
    e(f"""
.globl geglu_k2_kernel
.p2align 8
.type geglu_k2_kernel,@function
geglu_k2_kernel:
s_cmp_ge_u32 s2, 256
s_cbranch_scc1 L2_end
s_load_dwordx2 s[6:7], s[0:1], 32
s_load_dwordx2 s[30:31], s[0:1], 48
s_and_b32 s32, s2, 7
s_lshr_b32 s33, s2, 3
s_lshr_b32 s34, s32, 1
s_and_b32 s35, s32, 1
s_and_b32 s36, s33, 7
s_lshl_b32 s34, s34, 3
s_add_u32 s34, s34, s36
s_lshr_b32 s36, s33, 3
s_lshl_b32 s35, s35, 2
s_add_u32 s35, s35, s36
s_mul_i32 s37, s35, 160
s_lshl_b32 s38, s34, 6
v_lshrrev_b32 v1, 6, v0
v_and_b32 v2, 63, v0
s_nop 0
v_readfirstlane_b32 s40, v1
s_waitcnt lgkmcnt(0)
s_mov_b32 s8, s30
s_and_b32 s9, s31, 0xffff
s_mov_b32 s10, 7077888
s_mov_b32 s11, 0x00020000
s_add_u32 s12, s30, {WDP_OFF}
s_addc_u32 s13, s31, 0
s_and_b32 s13, s13, 0xffff
s_mov_b32 s14, 2211840
s_mov_b32 s15, 0x00020000
s_mov_b32 s20, s6
s_and_b32 s21, s7, 0xffff
s_mov_b32 s22, 2621440
s_mov_b32 s23, 0x00020000
s_cmp_ge_u32 s40, 4
s_cbranch_scc1 L2_loader
""")
    SA, SB, ACC = 40, 88, 136
    XAD0, XAD1, WAD = 4, 12, 20
    if K2LA:
        e(f"""
s_mov_b32 s24, s30
s_and_b32 s25, s31, 0xffff
s_mov_b32 s26, {WDP_OFF + 2211840}
s_mov_b32 s27, 0x00020000
s_lshr_b32 s44, s32, 1
s_lshl_b32 s44, s44, 9
s_lshl_b32 s45, s33, 4
s_add_u32 s44, s44, s45
v_add_u32 v150, s44, v2
v_mul_u32_u24 v150, 0xd80, v150
s_and_b32 s44, s32, 1
s_lshl_b32 s44, s44, 2
s_lshr_b32 s45, s33, 3
s_add_u32 s44, s44, s45
s_mul_i32 s44, s44, 276480
s_and_b32 s45, s33, 7
s_mul_i32 s45, s45, 1280
s_add_u32 s44, s44, s45
s_add_u32 s44, s44, {WDP_OFF - 2048}
v_lshlrev_b32 v151, 7, v2
v_add_u32 v151, s44, v151
v_cmp_gt_u32 vcc, 16, v2
v_mov_b32 v152, 10240
v_mov_b32 v153, 128
v_cndmask_b32 v150, v151, v150, vcc
v_cndmask_b32 v152, v152, v153, vcc
v_cmp_gt_u32 vcc, 26, v2
v_mov_b32 v153, 0x20000000
s_cmp_eq_u32 s40, 0
s_cselect_b32 s44, 0, 0x20000000
v_cndmask_b32 v150, v153, v150, vcc
v_or_b32 v150, s44, v150
v_mul_u32_u24 v153, {K2_NBUF}, v152
v_add_u32 v150, v150, v153
""")
    def k2touch():
        if not K2LA: return
        e("buffer_load_dword v156, v150, s[24:27], 0 offen")
        e("v_add_u32 v150, v150, v152")
    if int(os.environ.get('K2PF','0')):
        e("""
s_lshl_b32 s44, s33, 2
s_add_u32 s44, s44, s40
v_lshlrev_b32 v3, 7, v2
s_lshr_b32 s45, s32, 1
s_mul_i32 s45, s45, 1769472
s_mul_i32 s46, s44, 13824
s_add_u32 s45, s45, s46
s_and_b32 s46, s32, 1
s_mul_i32 s46, s46, 1105920
s_mul_i32 s47, s44, 8704
s_add_u32 s46, s46, s47
s_add_u32 s47, s45, 8192
s_add_u32 s48, s46, 1024
buffer_load_dword v156, v3, s[12:15], s46 offen
buffer_load_dword v157, v3, s[8:11], s45 offen
buffer_load_dword v158, v3, s[8:11], s47 offen
buffer_load_dword v159, v3, s[12:15], s48 offen
""")
    if PRIO: e(f"s_setprio {PRIO}")
    e(f"""
v_and_b32 v30, 15, v2
v_lshrrev_b32 v31, 4, v2
v_lshrrev_b32 v32, 1, v30
v_xor_b32 v32, v31, v32
v_lshlrev_b32 v32, 4, v32
v_lshl_add_u32 v32, v30, 7, v32
s_lshl_b32 s43, s40, 11
v_add_u32 v{XAD0}, s43, v32
v_xor_b32 v{XAD1}, 64, v{XAD0}
v_lshrrev_b32 v33, 1, v31
v_lshlrev_b32 v33, 4, v33
v_and_b32 v34, 1, v31
v_lshl_add_u32 v33, v34, 2, v33
v_bfe_u32 v34, v2, 2, 2
v_add_u32 v33, v33, v34
v_mul_u32_u24 v33, 160, v33
v_and_b32 v34, 3, v2
v_lshl_add_u32 v33, v34, 3, v33
v_add_u32 v{WAD}, {K2_HB}, v33
""")
    for b in range(1, NB):
        e(f"v_add_u32 v{XAD0+b}, {b*K2_BUF}, v{XAD0}")
        e(f"v_add_u32 v{XAD1+b}, {b*K2_BUF}, v{XAD1}")
        e(f"v_add_u32 v{WAD+b}, {b*K2_BUF}, v{WAD}")
    e(f"""
s_lshl_b32 s43, s40, 4
v_add_u32 v3, s43, v30
v_mul_u32_u24 v3, 0x500, v3
v_lshl_add_u32 v3, v31, 3, v3
s_mul_i32 s44, s38, 1280
s_add_u32 s44, s44, s37
""")
    for i in range(20):
        e(f"v_mov_b32 v{ACC+i}, 0")
    def reads(s, S):
        b = s % NB
        r = []
        for ks in range(2):
            xa = (XAD0 if ks == 0 else XAD1) + b
            r.append(f"ds_read_b128 v[{S+4*ks}:{S+4*ks+3}], v{xa}")
            for cb in range(5):
                for h in range(2):
                    off = (32*ks + 8*h)*160 + 32*cb
                    w = S + 8 + 20*ks + 4*cb + 2*h
                    r.append(f"ds_read_b64_tr_b16 v[{w}:{w+1}], v{WAD+b} offset:{off}")
        return r
    def mfmas(S):
        m = []
        for ks in range(2):
            for cb in range(5):
                a = ACC + 4*cb
                w = S + 8 + 20*ks + 4*cb
                m.append(f"v_mfma_f32_16x16x32_bf16 v[{a}:{a+3}], v[{w}:{w+3}], v[{S+4*ks}:{S+4*ks+3}], v[{a}:{a+3}]")
        return m
    sets = [SA, SB]
    e("s_barrier")
    for t in range(K2_NBUF, min(K2LA+1, NST)): k2touch()
    for r in reads(0, sets[0]): e(r)
    e("s_waitcnt lgkmcnt(0)")
    for s in range(1, NST):
        e("s_barrier")
        if K2LA and s + K2LA < NST: k2touch()
        rd = reads(s, sets[s%2]); mf = mfmas(sets[(s-1)%2])
        o = []
        for i, m in enumerate(mf):
            o += rd[2*i:2*i+2]; o.append(m)
        o += rd[20:]
        for x in o: e(x)
        e("s_waitcnt lgkmcnt(0)")
    for m in mfmas(sets[(NST-1)%2]): e(m)
    e("s_nop 7")
    for cb in range(5):
        a = ACC + 4*cb
        e(f"v_cvt_pk_bf16_f32 v{40+2*cb}, v{a}, v{a+1}")
        e(f"v_cvt_pk_bf16_f32 v{41+2*cb}, v{a+2}, v{a+3}")
        e(f"buffer_store_dwordx2 v[{40+2*cb}:{41+2*cb}], v3, s[20:23], s44 offen offset:{32*cb} {STPOL}")
    e("s_branch L2_end")
    e("L2_loader:")
    st = Stamps(e)
    st.rt(0)
    st.st()
    e(f"""
s_sub_u32 s41, s40, 4
s_lshr_b32 s42, s41, 1
s_and_b32 s43, s41, 1
v_lshrrev_b32 v3, 3, v2
v_and_b32 v4, 7, v2
v_lshrrev_b32 v5, 4, v2
s_lshl_b32 s44, s41, 4
s_add_u32 s44, s44, s38
v_add_u32 v3, s44, v3
v_mov_b32 v6, 0xd80
v_mul_lo_u32 v3, v3, v6
v_xor_b32 v6, v4, v5
v_lshlrev_b32 v6, 4, v6
v_add_u32 v16, v3, v6
v_xor_b32 v6, 64, v6
v_add_u32 v17, v3, v6
v_add_u32 v17, 27648, v17
s_mul_i32 s44, s42, 5120
s_mul_i32 s47, s43, 3072
s_add_u32 s44, s44, s47
s_mul_i32 s47, s35, 276480
s_add_u32 s47, s47, s44
v_lshlrev_b32 v20, 4, v2
v_add_u32 v20, s47, v20
v_add_u32 v21, 1024, v20
v_add_u32 v22, 2048, v20
s_lshl_b32 s45, s41, 11
s_add_u32 s46, s44, {K2_HB}
s_cmp_eq_u32 s43, 1
s_cbranch_scc1 L2_loader_odd
""")
    def loader(nw, stamps):
        vm = VM(e)
        if ROT:
            e("""
s_and_b32 s54, s33, 7
s_mul_i32 s54, s54, 3
s_lshr_b32 s55, s33, 3
s_mul_i32 s55, s55, 7
s_add_u32 s54, s54, s55
s_sub_u32 s55, s54, 27
s_cmp_ge_u32 s54, 27
s_cselect_b32 s54, s55, s54
""")
        def issue(s):
            b = s % NB
            if ROT:
                e("s_lshl_b32 s48, s54, 7")
                e("s_mul_i32 s49, s54, 10240")
                e("s_add_u32 s54, s54, 1")
                e("s_cmp_ge_u32 s54, 27")
                e("s_cselect_b32 s54, 0, s54")
            else:
                e(f"s_mov_b32 s48, {s*128}")
                e(f"s_mov_b32 s49, {s*10240}")
            for dd in range(2):
                e(f"s_add_u32 m0, s45, {b*K2_BUF + dd*1024}")
                e("s_nop 0")
                vm.op(s, f"buffer_load_dwordx4 v{16+dd}, s[8:11], s48 offen lds")
            for dd in range(nw):
                e(f"s_add_u32 m0, s46, {b*K2_BUF + dd*1024}")
                e("s_nop 0")
                vm.op(s, f"buffer_load_dwordx4 v{20+dd}, s[12:15], s49 offen lds")
        nxt = 0
        while nxt < 2:
            issue(nxt); nxt += 1
        if stamps: st.st()
        for s in range(NST):
            vm.wait(s)
            e("s_barrier")
            if stamps and s % 2 == 0: st.st()
            lim = min(2*s+3, max(NB-1, s+NB-1), NST-1)
            while nxt <= lim:
                issue(nxt); nxt += 1
    loader(3, True)
    st.rt(1)
    if STAMP: e("s_waitcnt lgkmcnt(0)")
    st.flush("L2_nost", 4)
    e("s_branch L2_end")
    e("L2_loader_odd:")
    loader(2, False)
    e("L2_end:")
    e("s_endpgm")

def desc(name, vgpr):
    acc = (vgpr + 3)//4*4
    return f"""
.amdhsa_kernel {name}
  .amdhsa_next_free_vgpr {vgpr}
  .amdhsa_next_free_sgpr 102
  .amdhsa_accum_offset {acc}
  .amdhsa_group_segment_fixed_size 0
  .amdhsa_kernarg_size 56
  .amdhsa_user_sgpr_count 2
  .amdhsa_user_sgpr_kernarg_segment_ptr 1
  .amdhsa_system_sgpr_workgroup_id_x 1
.end_amdhsa_kernel
"""

def main():
    e = E()
    gen_k1(e)
    gen_k2(e)
    out = HDR % (K1_LDS, K2_LDS) + e.text()
    out += '.section .rodata,"a"\n.p2align 6' + desc('geglu_k1_kernel', 248)
    out += '.p2align 6' + desc('geglu_k2_kernel', 160)
    path = sys.argv[1] if len(sys.argv) > 1 else 'standalone__geglu_ffn__prompt.s'
    open(path, 'w').write(out)

main()
```

```python
import sys, os, struct
STAMP = int(os.environ.get('STAMP','0'))
STPOL = os.environ.get('STPOL','sc1')

HDR = """; Kernarg layout for this problem (56 bytes, ptrs only, base s[0:1]):
; @launch kernel=geglu_k1_kernel grid=(256,1,1) block=(512,1,1) lds=%d
; @launch kernel=geglu_k2_kernel grid=(256,1,1) block=(512,1,1) lds=%d
.amdgcn_target "amdgcn-amd-amdhsa--gfx950"
.text
"""

class E:
    def __init__(self):
        self.l = []
    def __call__(self, s):
        for x in s.strip('\n').split('\n'):
            x = x.strip()
            if not x: continue
            self.l.append(x if x.endswith(':') else '    ' + x)
    def text(self):
        return '\n'.join(self.l) + '\n'

class Stamps:
    def __init__(self, e, base=64):
        self.e = e; self.n = 0; self.base = base
    def st(self):
        if not STAMP: return
        if self.base + 2*self.n + 1 > 97: return
        self.e(f"s_memtime s[{self.base+2*self.n}:{self.base+2*self.n+1}]")
        self.n += 1
    def rt(self, idx):
        if not STAMP: return
        self.e(f"s_memrealtime s[{98+2*idx}:{99+2*idx}]")
    def flush(self, lab, wave):
        if not STAMP: return
        e = self.e
        e(f"s_cmp_lg_u32 s2, {STAMP-1}")
        e(f"s_cbranch_scc1 {lab}")
        e(f"s_cmp_lg_u32 s40, {wave}")
        e(f"s_cbranch_scc1 {lab}")
        e("s_load_dwordx2 s[56:57], s[0:1], 40")
        e("s_waitcnt lgkmcnt(0)")
        e("s_and_b32 s57, s57, 0xffff")
        e("s_mov_b32 s58, 256")
        e("s_mov_b32 s59, 0x00020000")
        for i in range(self.n):
            e(f"s_sub_u32 s60, s{self.base+2*i}, s{self.base}")
            e(f"v_mov_b32 v14, s60")
            e(f"v_mov_b32 v15, {4*i}")
            e("buffer_store_dword v14, v15, s[56:59], 0 offen")
        for i in range(2):
            e(f"v_mov_b32 v14, s{98+2*i}")
            e(f"v_mov_b32 v15, {160+4*i}")
            e("buffer_store_dword v14, v15, s[56:59], 0 offen")
        e(f"{lab}:")

def interleave(mf, rd, lead=0, every=1):
    out = []
    rd = list(rd)
    for _ in range(lead):
        if rd: out.append(rd.pop(0))
    for i, m in enumerate(mf):
        out.append(m)
        if (i % every) == every - 1 and rd:
            out.append(rd.pop(0))
    out.extend(rd)
    return out

C0 = -2.0 * 1.4426950408889634 * 0.7978845608028654
C1 = C0 * 0.044715
def f2u(f):
    return struct.unpack('<I', struct.pack('<f', f))[0]

WDP_OFF = 0x800000

K1_XB = 16384
K1_WB = 14336
K1_BUF = K1_XB + 2*K1_WB
K1_NBUF = 3
K1_LDS = K1_BUF * K1_NBUF
K1_NST = 10
K1_EPITCH = 240
K1_EMAT = 128 * K1_EPITCH
K1_EPI = K1_BUF

def gen_k1(e):
    NST, NB = K1_NST, K1_NBUF
    e(f"""
.globl geglu_k1_kernel
.p2align 8
.type geglu_k1_kernel,@function
geglu_k1_kernel:
s_cmp_ge_u32 s2, 256
s_cbranch_scc1 L1_end
s_load_dwordx4 s[4:7], s[0:1], 0
s_load_dwordx4 s[28:31], s[0:1], 16
s_load_dwordx2 s[52:53], s[0:1], 48
s_and_b32 s32, s2, 7
s_lshr_b32 s33, s2, 3
s_lshr_b32 s34, s32, 2
s_and_b32 s35, s32, 3
s_and_b32 s36, s33, 7
s_lshl_b32 s34, s34, 3
s_add_u32 s34, s34, s36
s_lshr_b32 s36, s33, 3
s_lshl_b32 s35, s35, 2
s_add_u32 s35, s35, s36
s_mul_i32 s36, s35, 27
s_lshr_b32 s36, s36, 2
s_lshl_b32 s37, s36, 5
s_lshl_b32 s38, s34, 7
v_lshrrev_b32 v1, 6, v0
v_and_b32 v2, 63, v0
s_nop 0
v_readfirstlane_b32 s40, v1
s_waitcnt lgkmcnt(0)
s_mov_b32 s8, s4
s_and_b32 s9, s5, 0xffff
s_mov_b32 s10, 2621440
s_mov_b32 s11, 0x00020000
s_mov_b32 s12, s6
s_and_b32 s13, s7, 0xffff
s_mov_b32 s14, 2211840
s_mov_b32 s15, 0x00020000
s_mov_b32 s16, s28
s_and_b32 s17, s29, 0xffff
s_mov_b32 s18, 2211840
s_mov_b32 s19, 0x00020000
s_mov_b32 s20, s52
s_and_b32 s21, s53, 0xffff
s_mov_b32 s22, 7077888
s_mov_b32 s23, 0x00020000
s_mov_b32 s3, {K1_BUF}
s_cmp_lt_u32 s40, 4
s_cbranch_scc1 L1_compute
""")
    st = Stamps(e)
    st.rt(0)
    st.st()
    e(f"""
s_sub_u32 s41, s40, 4
s_lshr_b32 s42, s41, 1
s_and_b32 s43, s41, 1
s_cmp_eq_u32 s42, 0
s_cselect_b32 s24, s12, s16
s_cselect_b32 s25, s13, s17
s_mov_b32 s26, 2211840
s_mov_b32 s27, 0x00020000
v_lshrrev_b32 v3, 3, v2
v_and_b32 v4, 7, v2
v_lshrrev_b32 v5, 4, v2
s_lshl_b32 s44, s41, 5
s_add_u32 s44, s44, s38
v_add_u32 v3, s44, v3
v_mov_b32 v6, 0x500
v_mul_lo_u32 v3, v3, v6
v_xor_b32 v6, v4, v5
v_lshlrev_b32 v6, 4, v6
v_add_u32 v16, v3, v6
v_xor_b32 v6, 64, v6
v_add_u32 v17, v3, v6
v_add_u32 v17, 10240, v17
v_add_u32 v18, 20480, v16
v_add_u32 v19, 20480, v17
s_mul_i32 s44, s43, 448
s_lshl_b32 s45, s41, 12
s_mul_i32 s46, s42, {K1_WB}
s_mul_i32 s47, s43, 7168
s_add_u32 s46, s46, s47
s_add_u32 s46, s46, {K1_XB}
s_mov_b32 s48, 0
s_mov_b32 s49, 0
s_mov_b32 s54, 0
""")
    for dd in range(7):
        e(f"""
v_add_u32 v3, {64*dd}, v2
v_add_u32 v3, s44, v3
v_mul_u32_u24 v4, 4682, v3
v_lshrrev_b32 v4, 16, v4
v_mul_u32_u24 v5, 14, v4
v_sub_u32 v5, v3, v5
v_and_b32 v6, 0x33, v4
v_bfe_u32 v7, v4, 2, 1
v_lshl_add_u32 v6, v7, 3, v6
v_bfe_u32 v7, v4, 3, 1
v_lshl_add_u32 v6, v7, 2, v6
v_mul_u32_u24 v6, 0xd80, v6
v_lshl_add_u32 v6, v5, 4, v6
v_add_u32 v{20+dd}, s37, v6
""")
    def issue():
        for dd in range(4):
            e(f"s_add_u32 m0, s45, {dd*1024}")
            e("s_nop 0")
            e(f"buffer_load_dwordx4 v{16+dd}, s[8:11], s48 offen lds")
        for dd in range(7):
            e(f"s_add_u32 m0, s46, {dd*1024}")
            e("s_nop 0")
            e(f"buffer_load_dwordx4 v{20+dd}, s[24:27], s49 offen lds")
        e(f"""
s_add_u32 s48, s48, 128
s_add_u32 s49, s49, 221184
s_add_u32 s54, s54, 1
s_cmp_eq_u32 s54, 3
s_cselect_b32 s55, {K1_BUF - 3*K1_BUF}, s3
s_cselect_b32 s54, 0, s54
s_add_u32 s45, s45, s55
s_add_u32 s46, s46, s55
""")
    issue()
    e(f"""
s_mov_b32 s60, s30
s_and_b32 s61, s31, 0xffff
s_mov_b32 s62, 2211840
s_mov_b32 s63, 0x00020000
s_add_u32 s56, s52, {WDP_OFF}
s_addc_u32 s57, s53, 0
s_and_b32 s57, s57, 0xffff
s_mov_b32 s58, 2211840
s_mov_b32 s59, 0x00020000
s_lshl_b32 s50, s2, 3
s_lshl_b32 s51, s41, 1
s_add_u32 s50, s50, s51
""")
    for i in range(3):
        e(f"""
v_add_u32 v3, {64*i}, v2
v_cmp_le_u32 vcc, 80, v3
s_nop 1
v_cndmask_b32 v4, 0, 1, vcc
v_mul_u32_u24 v5, 80, v4
v_sub_u32 v5, v3, v5
v_add_u32 v4, s50, v4
v_mul_u32_u24 v6, 0x500, v4
v_lshl_add_u32 v{30+i}, v5, 4, v6
v_mul_u32_u24 v6, 6554, v5
v_lshrrev_b32 v6, 16, v6
v_mul_u32_u24 v7, 10, v6
v_sub_u32 v7, v5, v7
v_mov_b32 v8, 276480
v_mul_lo_u32 v6, v6, v8
v_lshl_add_u32 v6, v7, 4, v6
v_and_b32 v7, 0xfffffff3, v4
v_bfe_u32 v8, v4, 2, 1
v_lshl_add_u32 v7, v8, 3, v7
v_bfe_u32 v8, v4, 3, 1
v_lshl_add_u32 v7, v8, 2, v7
v_mul_u32_u24 v7, 160, v7
v_add_u32 v{33+i}, v6, v7
""")
    e("""
v_cmp_le_u32 vcc, 32, v2
v_mov_b32 v3, 0x10000000
s_mov_b32 s51, 0
s_cmp_ge_u32 s2, 216
s_cselect_b32 s51, 0x10000000, s51
v_cndmask_b32 v32, v32, v3, vcc
v_cndmask_b32 v35, v35, v3, vcc
v_or_b32 v33, s51, v33
v_or_b32 v34, s51, v34
v_or_b32 v35, s51, v35
""")
    for i in range(3):
        e(f"buffer_load_dwordx4 v[{40+4*i}:{43+4*i}], v{30+i}, s[60:63], 0 offen")
    e("s_waitcnt vmcnt(3)")
    e("s_barrier")
    st.st()
    issue()
    e("s_mov_b32 s39, 0")
    e("L1_lloop:")
    issue()
    e("""
s_waitcnt vmcnt(11)
s_barrier
s_add_u32 s39, s39, 1
s_cmp_lt_u32 s39, 8
s_cbranch_scc1 L1_lloop
s_waitcnt vmcnt(0)
s_barrier
""")
    st.st()
    for i in range(3):
        e(f"buffer_store_dwordx4 v[{40+4*i}:{43+4*i}], v{33+i}, s[56:59], 0 offen {STPOL}")
    e("s_branch L1_epi")
    e("L1_compute:")
    XA, XB, WA, WB, ACC = 16, 32, 48, 76, 104
    e("""
s_lshl_b32 s44, s2, 2
s_add_u32 s44, s44, s40
v_lshlrev_b32 v3, 7, v2
s_cmp_ge_u32 s44, 320
s_cbranch_scc1 L1_pf1
s_lshl_b32 s45, s44, 13
buffer_load_dword v216, v3, s[8:11], s45 offen
s_branch L1_pfd
L1_pf1:
s_cmp_ge_u32 s44, 590
s_cbranch_scc1 L1_pf2
s_sub_u32 s45, s44, 320
s_lshl_b32 s45, s45, 13
buffer_load_dword v216, v3, s[12:15], s45 offen
s_branch L1_pfd
L1_pf2:
s_sub_u32 s45, s44, 590
s_lshl_b32 s45, s45, 13
buffer_load_dword v216, v3, s[16:19], s45 offen
L1_pfd:
""")
    e(f"""
s_and_b32 s41, s40, 1
s_lshr_b32 s42, s40, 1
v_and_b32 v3, 15, v2
v_lshrrev_b32 v4, 4, v2
v_lshrrev_b32 v5, 1, v3
s_lshl_b32 s43, s41, 13
v_lshlrev_b32 v6, 7, v3
v_add_u32 v6, s43, v6
v_xor_b32 v7, v4, v5
v_lshlrev_b32 v7, 4, v7
v_add_u32 v8, v6, v7
v_xor_b32 v9, 64, v8
v_lshrrev_b32 v5, 1, v4
v_lshlrev_b32 v5, 4, v5
v_and_b32 v6, 1, v4
v_lshl_add_u32 v5, v6, 2, v5
v_bfe_u32 v6, v2, 2, 2
v_add_u32 v5, v5, v6
v_mul_u32_u24 v5, 224, v5
v_and_b32 v6, 3, v2
v_lshl_add_u32 v5, v6, 3, v5
s_mul_i32 s43, s42, {K1_WB}
s_add_u32 s43, s43, {K1_XB}
v_add_u32 v10, s43, v5
s_lshl_b32 s43, s41, 6
v_add_u32 v3, s43, v3
v_mul_u32_u24 v3, {K1_EPITCH}, v3
v_lshl_add_u32 v3, v4, 3, v3
s_mul_i32 s43, s42, {K1_EMAT}
s_add_u32 s43, s43, {K1_EPI}
v_add_u32 v3, s43, v3
s_mov_b32 s54, 0
s_mov_b32 s39, 1
""")
    def reads(ks, X, W):
        r = []
        xa = 'v8' if ks == 0 else 'v9'
        for rb in range(4):
            r.append(f"ds_read_b128 v[{X+4*rb}:{X+4*rb+3}], {xa} offset:{rb*2048}")
        for cb in range(7):
            for h in range(2):
                off = (32*ks + 8*h)*224 + 32*cb
                r.append(f"ds_read_b64_tr_b16 v[{W+4*cb+2*h}:{W+4*cb+2*h+1}], v10 offset:{off}")
        return r
    def mfmas(X, W, first=False):
        m = []
        for cb in range(7):
            for rb in range(4):
                a = ACC + 4*(rb*7+cb)
                c = "0" if first else f"v[{a}:{a+3}]"
                m.append(f"v_mfma_f32_16x16x32_bf16 v[{a}:{a+3}], v[{W+4*cb}:{W+4*cb+3}], v[{X+4*rb}:{X+4*rb+3}], {c}")
        return m
    e("s_barrier")
    for r in reads(0,XA,WA): e(r)
    for r in reads(1,XB,WB): e(r)
    e("s_waitcnt lgkmcnt(15)")
    for m in mfmas(XA,WA,True): e(m)
    e("L1_cloop:")
    e(f"""
s_add_u32 s54, s54, 1
s_cmp_eq_u32 s54, 3
s_cselect_b32 s55, {K1_BUF - 3*K1_BUF}, s3
s_cselect_b32 s54, 0, s54
s_waitcnt lgkmcnt(0)
v_add_u32 v8, s55, v8
v_add_u32 v9, s55, v9
v_add_u32 v10, s55, v10
s_barrier
""")
    for x in interleave(mfmas(XB,WB), reads(0,XA,WA), lead=1): e(x)
    e("s_waitcnt lgkmcnt(0)")
    for x in interleave(mfmas(XA,WA), reads(1,XB,WB), lead=1): e(x)
    e("""
s_add_u32 s39, s39, 1
s_cmp_lt_u32 s39, 10
s_cbranch_scc1 L1_cloop
s_waitcnt lgkmcnt(0)
""")
    tmps = [16+2*i for i in range(8)] + [48+2*i for i in range(14)]
    def cw(i):
        cb, rb = i//4, i%4
        a = ACC + 4*(rb*7+cb)
        tt = tmps[i % len(tmps)]
        e(f"v_cvt_pk_bf16_f32 v{tt}, v{a}, v{a+1}")
        e(f"v_cvt_pk_bf16_f32 v{tt+1}, v{a+2}, v{a+3}")
        e(f"ds_write_b64 v3, v[{tt}:{tt+1}] offset:{rb*16*K1_EPITCH + cb*32}")
    LAG = 8
    for i, m in enumerate(mfmas(XB,WB)):
        e(m)
        if i >= LAG: cw(i-LAG)
    e("s_nop 7")
    for i in range(28-LAG, 28): cw(i)
    e("s_waitcnt lgkmcnt(0)")
    e("L1_epi:")
    e(f"""
v_mul_u32_u24 v10, 4682, v0
v_lshrrev_b32 v10, 16, v10
v_mul_u32_u24 v11, 14, v10
v_sub_u32 v11, v0, v11
v_mul_u32_u24 v12, {K1_EPITCH}, v10
v_lshl_add_u32 v12, v11, 4, v12
v_add_u32 v12, {K1_EPI}, v12
v_mul_u32_u24 v13, 0xd80, v10
v_lshl_add_u32 v13, v11, 4, v13
v_mov_b32 v4, {hex(f2u(C0))}
v_mov_b32 v5, {hex(f2u(C0))}
v_mov_b32 v6, {hex(f2u(C1))}
v_mov_b32 v7, {hex(f2u(C1))}
v_mov_b32 v8, 1.0
v_mov_b32 v9, 1.0
s_mul_i32 s44, s38, 3456
s_add_u32 s44, s44, s37
s_mov_b32 s39, 0
s_barrier
""")
    st.st()
    if STAMP: e("s_waitcnt lgkmcnt(0)")
    e("s_cmp_ge_u32 s40, 7")
    e("s_cbranch_scc1 L1_fin")
    G, U = 56, 60
    GN, UN = 64, 68
    e(f"ds_read_b128 v[{GN}:{GN+3}], v12")
    e(f"ds_read_b128 v[{UN}:{UN+3}], v12 offset:{K1_EMAT}")
    e("L1_eloop:")
    base = 72
    g = [base + 2*j for j in range(4)]
    u = [base + 8 + 2*j for j in range(4)]
    t = [base + 16 + 2*j for j in range(4)]
    o = base + 24
    e("s_waitcnt lgkmcnt(0)")
    for j in range(4):
        e(f"v_lshlrev_b32 v{g[j]}, 16, v{GN+j}")
        e(f"v_and_b32 v{g[j]+1}, 0xffff0000, v{GN+j}")
    for j in range(4):
        e(f"v_lshlrev_b32 v{u[j]}, 16, v{UN+j}")
        e(f"v_and_b32 v{u[j]+1}, 0xffff0000, v{UN+j}")
    e(f"v_add_u32 v12, {32*K1_EPITCH}, v12")
    e(f"ds_read_b128 v[{GN}:{GN+3}], v12")
    e(f"ds_read_b128 v[{UN}:{UN+3}], v12 offset:{K1_EMAT}")
    for j in range(4):
        e(f"v_pk_mul_f32 v[{t[j]}:{t[j]+1}], v[{g[j]}:{g[j]+1}], v[{g[j]}:{g[j]+1}]")
    for j in range(4):
        e(f"v_pk_fma_f32 v[{t[j]}:{t[j]+1}], v[{t[j]}:{t[j]+1}], v[6:7], v[4:5]")
    for j in range(4):
        e(f"v_pk_mul_f32 v[{t[j]}:{t[j]+1}], v[{t[j]}:{t[j]+1}], v[{g[j]}:{g[j]+1}]")
    for j in range(4):
        e(f"v_exp_f32 v{t[j]}, v{t[j]}")
        e(f"v_exp_f32 v{t[j]+1}, v{t[j]+1}")
    e("s_nop 0")
    for j in range(4):
        e(f"v_pk_add_f32 v[{t[j]}:{t[j]+1}], v[{t[j]}:{t[j]+1}], v[8:9]")
    for j in range(4):
        e(f"v_rcp_f32 v{t[j]}, v{t[j]}")
        e(f"v_rcp_f32 v{t[j]+1}, v{t[j]+1}")
    e("s_nop 0")
    for j in range(4):
        e(f"v_pk_mul_f32 v[{t[j]}:{t[j]+1}], v[{t[j]}:{t[j]+1}], v[{g[j]}:{g[j]+1}]")
    for j in range(4):
        e(f"v_cvt_pk_bf16_f32 v{g[j]}, v{t[j]}, v{t[j]+1}")
    for j in range(4):
        e(f"v_lshlrev_b32 v{t[j]}, 16, v{g[j]}")
        e(f"v_and_b32 v{t[j]+1}, 0xffff0000, v{g[j]}")
    for j in range(4):
        e(f"v_pk_mul_f32 v[{t[j]}:{t[j]+1}], v[{t[j]}:{t[j]+1}], v[{u[j]}:{u[j]+1}]")
    for j in range(4):
        e(f"v_cvt_pk_bf16_f32 v{o+j}, v{t[j]}, v{t[j]+1}")
    e(f"buffer_store_dwordx4 v[{o}:{o+3}], v13, s[20:23], s44 offen {STPOL}")
    e(f"""
s_add_u32 s44, s44, {32*3456}
s_add_u32 s39, s39, 1
s_cmp_lt_u32 s39, 4
s_cbranch_scc1 L1_eloop
""")
    e("L1_fin:")
    st.st()
    if STAMP: e("s_waitcnt vmcnt(0)")
    st.st()
    st.rt(1)
    if STAMP: e("s_waitcnt lgkmcnt(0)")
    st.flush("L1_nost", 4)
    e("L1_end:")
    e("s_endpgm")

K2_HB = 8192
K2_WB = 10240
K2_BUF = K2_HB + K2_WB
K2_NBUF = 8
K2_LDS = K2_BUF*K2_NBUF
K2_NST = 27

def gen_k2(e):
    NST, NB = K2_NST, K2_NBUF
    e(f"""
.globl geglu_k2_kernel
.p2align 8
.type geglu_k2_kernel,@function
geglu_k2_kernel:
s_cmp_ge_u32 s2, 256
s_cbranch_scc1 L2_end
s_load_dwordx2 s[6:7], s[0:1], 32
s_load_dwordx2 s[30:31], s[0:1], 48
s_and_b32 s32, s2, 7
s_lshr_b32 s33, s2, 3
s_lshr_b32 s34, s32, 1
s_and_b32 s35, s32, 1
s_and_b32 s36, s33, 7
s_lshl_b32 s34, s34, 3
s_add_u32 s34, s34, s36
s_lshr_b32 s36, s33, 3
s_lshl_b32 s35, s35, 2
s_add_u32 s35, s35, s36
s_mul_i32 s37, s35, 160
s_lshl_b32 s38, s34, 6
v_lshrrev_b32 v1, 6, v0
v_and_b32 v2, 63, v0
s_nop 0
v_readfirstlane_b32 s40, v1
s_waitcnt lgkmcnt(0)
s_mov_b32 s8, s30
s_and_b32 s9, s31, 0xffff
s_mov_b32 s10, 7077888
s_mov_b32 s11, 0x00020000
s_add_u32 s12, s30, {WDP_OFF}
s_addc_u32 s13, s31, 0
s_and_b32 s13, s13, 0xffff
s_mov_b32 s14, 2211840
s_mov_b32 s15, 0x00020000
s_mov_b32 s20, s6
s_and_b32 s21, s7, 0xffff
s_mov_b32 s22, 2621440
s_mov_b32 s23, 0x00020000
s_mov_b32 s3, {K2_BUF}
s_cmp_lt_u32 s40, 4
s_cbranch_scc1 L2_compute
""")
    st = Stamps(e)
    st.rt(0)
    st.st()
    e(f"""
s_sub_u32 s41, s40, 4
s_lshr_b32 s42, s41, 1
s_and_b32 s43, s41, 1
v_lshrrev_b32 v3, 3, v2
v_and_b32 v4, 7, v2
v_lshrrev_b32 v5, 4, v2
s_lshl_b32 s44, s41, 4
s_add_u32 s44, s44, s38
v_add_u32 v3, s44, v3
v_mov_b32 v6, 0xd80
v_mul_lo_u32 v3, v3, v6
v_xor_b32 v6, v4, v5
v_lshlrev_b32 v6, 4, v6
v_add_u32 v16, v3, v6
v_xor_b32 v6, 64, v6
v_add_u32 v17, v3, v6
v_add_u32 v17, 27648, v17
s_mul_i32 s44, s42, 5120
s_mul_i32 s47, s43, 3072
s_add_u32 s44, s44, s47
s_mul_i32 s47, s35, 276480
s_add_u32 s47, s47, s44
v_lshlrev_b32 v20, 4, v2
v_add_u32 v20, s47, v20
v_add_u32 v21, 1024, v20
v_add_u32 v22, 2048, v20
s_lshl_b32 s45, s41, 11
s_add_u32 s46, s44, {K2_HB}
s_mov_b32 s48, 0
s_mov_b32 s49, 0
s_mov_b32 s54, 0
s_mov_b32 s39, 0
s_cmp_eq_u32 s43, 1
s_cbranch_scc1 L2_loader_odd
""")
    def loader(nw, tag, stamps):
        n = 2 + nw
        def issue():
            for dd in range(2):
                e(f"s_add_u32 m0, s45, {dd*1024}")
                e("s_nop 0")
                e(f"buffer_load_dwordx4 v{16+dd}, s[8:11], s48 offen lds")
            for dd in range(nw):
                e(f"s_add_u32 m0, s46, {dd*1024}")
                e("s_nop 0")
                e(f"buffer_load_dwordx4 v{20+dd}, s[12:15], s49 offen lds")
            e(f"""
s_add_u32 s48, s48, 128
s_add_u32 s49, s49, 10240
s_add_u32 s54, s54, 1
s_cmp_eq_u32 s54, {NB}
s_cselect_b32 s55, {K2_BUF - NB*K2_BUF}, s3
s_cselect_b32 s54, 0, s54
s_add_u32 s45, s45, s55
s_add_u32 s46, s46, s55
""")
        e(f"L2_pl{tag}:")
        issue()
        e(f"""
s_add_u32 s39, s39, 1
s_cmp_lt_u32 s39, {NB-1}
s_cbranch_scc1 L2_pl{tag}
s_mov_b32 s39, 0
""")
        if stamps: st.st()
        e(f"L2_ml{tag}:")
        e(f"s_waitcnt vmcnt({n*(NB-2)})")
        e("s_barrier")
        issue()
        e(f"""
s_add_u32 s39, s39, 1
s_cmp_lt_u32 s39, {NST-NB+1}
s_cbranch_scc1 L2_ml{tag}
""")
        if stamps: st.st()
        for s in range(NST-NB+1, NST):
            e(f"s_waitcnt vmcnt({n*(NST-1-s)})")
            e("s_barrier")
        if stamps: st.st()
    loader(3, 'a', True)
    st.rt(1)
    if STAMP: e("s_waitcnt lgkmcnt(0)")
    st.flush("L2_nost", 4)
    e("s_branch L2_end")
    e("L2_loader_odd:")
    loader(2, 'b', False)
    e("s_branch L2_end")
    e("L2_compute:")
    SA, SB, ACC = 40, 88, 136
    e(f"""
v_and_b32 v30, 15, v2
v_lshrrev_b32 v31, 4, v2
v_lshrrev_b32 v32, 1, v30
v_xor_b32 v32, v31, v32
v_lshlrev_b32 v32, 4, v32
v_lshl_add_u32 v32, v30, 7, v32
s_lshl_b32 s43, s40, 11
v_add_u32 v4, s43, v32
v_xor_b32 v5, 64, v4
v_lshrrev_b32 v33, 1, v31
v_lshlrev_b32 v33, 4, v33
v_and_b32 v34, 1, v31
v_lshl_add_u32 v33, v34, 2, v33
v_bfe_u32 v34, v2, 2, 2
v_add_u32 v33, v33, v34
v_mul_u32_u24 v33, 160, v33
v_and_b32 v34, 3, v2
v_lshl_add_u32 v33, v34, 3, v33
v_add_u32 v6, {K2_HB}, v33
s_lshl_b32 s43, s40, 4
v_add_u32 v3, s43, v30
v_mul_u32_u24 v3, 0x500, v3
v_lshl_add_u32 v3, v31, 3, v3
s_mul_i32 s44, s38, 1280
s_add_u32 s44, s44, s37
s_mov_b32 s54, 0
s_mov_b32 s39, 0
""")
    for i in range(20):
        e(f"v_mov_b32 v{ACC+i}, 0")
    def reads(S):
        r = []
        for ks in range(2):
            xa = 'v4' if ks == 0 else 'v5'
            r.append(f"ds_read_b128 v[{S+4*ks}:{S+4*ks+3}], {xa}")
            for cb in range(5):
                for h in range(2):
                    off = (32*ks + 8*h)*160 + 32*cb
                    w = S + 8 + 20*ks + 4*cb + 2*h
                    r.append(f"ds_read_b64_tr_b16 v[{w}:{w+1}], v6 offset:{off}")
        return r
    def mfmas(S):
        m = []
        for ks in range(2):
            for cb in range(5):
                a = ACC + 4*cb
                w = S + 8 + 20*ks + 4*cb
                m.append(f"v_mfma_f32_16x16x32_bf16 v[{a}:{a+3}], v[{w}:{w+3}], v[{S+4*ks}:{S+4*ks+3}], v[{a}:{a+3}]")
        return m
    def adv():
        e(f"""
s_add_u32 s54, s54, 1
s_cmp_eq_u32 s54, {NB}
s_cselect_b32 s55, {K2_BUF - NB*K2_BUF}, s3
s_cselect_b32 s54, 0, s54
s_waitcnt lgkmcnt(0)
v_add_u32 v4, s55, v4
v_add_u32 v5, s55, v5
v_add_u32 v6, s55, v6
s_barrier
""")
    def stage(Snew, Sold):
        rd = reads(Snew); mf = mfmas(Sold)
        o = []
        for i, m in enumerate(mf):
            o += rd[2*i:2*i+2]; o.append(m)
        o += rd[20:]
        for x in o: e(x)
    e("s_barrier")
    for r in reads(SA): e(r)
    e("L2_cloop:")
    adv(); stage(SB, SA)
    adv(); stage(SA, SB)
    e("""
s_add_u32 s39, s39, 1
s_cmp_lt_u32 s39, 13
s_cbranch_scc1 L2_cloop
s_waitcnt lgkmcnt(0)
""")
    for m in mfmas(SA): e(m)
    e("s_nop 7")
    for cb in range(5):
        a = ACC + 4*cb
        e(f"v_cvt_pk_bf16_f32 v{40+2*cb}, v{a}, v{a+1}")
        e(f"v_cvt_pk_bf16_f32 v{41+2*cb}, v{a+2}, v{a+3}")
        e(f"buffer_store_dwordx2 v[{40+2*cb}:{41+2*cb}], v3, s[20:23], s44 offen offset:{32*cb} {STPOL}")
    e("L2_end:")
    e("s_endpgm")

def desc(name, vgpr):
    acc = (vgpr + 3)//4*4
    return f"""
.amdhsa_kernel {name}
  .amdhsa_next_free_vgpr {vgpr}
  .amdhsa_next_free_sgpr 102
  .amdhsa_accum_offset {acc}
  .amdhsa_group_segment_fixed_size 0
  .amdhsa_kernarg_size 56
  .amdhsa_user_sgpr_count 2
  .amdhsa_user_sgpr_kernarg_segment_ptr 1
  .amdhsa_system_sgpr_workgroup_id_x 1
.end_amdhsa_kernel
"""

def main():
    e = E()
    gen_k1(e)
    gen_k2(e)
    out = HDR % (K1_LDS, K2_LDS) + e.text()
    out += '.section .rodata,"a"\n.p2align 6' + desc('geglu_k1_kernel', 224)
    out += '.p2align 6' + desc('geglu_k2_kernel', 160)
    path = sys.argv[1] if len(sys.argv) > 1 else 'standalone__geglu_ffn__prompt.s'
    open(path, 'w').write(out)

main()
```

```python
import sys, os, struct
STAMP = int(os.environ.get('STAMP','0'))
STPOL = os.environ.get('STPOL','sc1')
PFW = int(os.environ.get('PFW','0'))

HDR = """; Kernarg layout for this problem (56 bytes, ptrs only, base s[0:1]):
; @launch kernel=geglu_k1_kernel grid=(256,1,1) block=(512,1,1) lds=%d
; @launch kernel=geglu_k2_kernel grid=(256,1,1) block=(512,1,1) lds=%d
.amdgcn_target "amdgcn-amd-amdhsa--gfx950"
.text
"""

class E:
    def __init__(self):
        self.l = []
    def __call__(self, s):
        for x in s.strip('\n').split('\n'):
            x = x.strip()
            if not x: continue
            self.l.append(x if x.endswith(':') else '    ' + x)
    def text(self):
        return '\n'.join(self.l) + '\n'

class Stamps:
    def __init__(self, e, base=64):
        self.e = e; self.n = 0; self.base = base
    def st(self):
        if not STAMP: return
        if self.base + 2*self.n + 1 > 97: return
        self.e(f"s_memtime s[{self.base+2*self.n}:{self.base+2*self.n+1}]")
        self.n += 1
    def rt(self, idx):
        if not STAMP: return
        self.e(f"s_memrealtime s[{98+2*idx}:{99+2*idx}]")
    def flush(self, lab, wave):
        if not STAMP: return
        e = self.e
        e(f"s_cmp_lg_u32 s2, {STAMP-1}")
        e(f"s_cbranch_scc1 {lab}")
        e(f"s_cmp_lg_u32 s40, {wave}")
        e(f"s_cbranch_scc1 {lab}")
        e("s_load_dwordx2 s[56:57], s[0:1], 40")
        e("s_waitcnt lgkmcnt(0)")
        e("s_and_b32 s57, s57, 0xffff")
        e("s_mov_b32 s58, 256")
        e("s_mov_b32 s59, 0x00020000")
        for i in range(self.n):
            e(f"s_sub_u32 s60, s{self.base+2*i}, s{self.base}")
            e(f"v_mov_b32 v14, s60")
            e(f"v_mov_b32 v15, {4*i}")
            e("buffer_store_dword v14, v15, s[56:59], 0 offen")
        for i in range(2):
            e(f"v_mov_b32 v14, s{98+2*i}")
            e(f"v_mov_b32 v15, {160+4*i}")
            e("buffer_store_dword v14, v15, s[56:59], 0 offen")
        e(f"{lab}:")

def interleave(mf, rd, lead=0, every=1):
    out = []
    rd = list(rd)
    for _ in range(lead):
        if rd: out.append(rd.pop(0))
    for i, m in enumerate(mf):
        out.append(m)
        if (i % every) == every - 1 and rd:
            out.append(rd.pop(0))
    out.extend(rd)
    return out

C0 = -2.0 * 1.4426950408889634 * 0.7978845608028654
C1 = C0 * 0.044715
def f2u(f):
    return struct.unpack('<I', struct.pack('<f', f))[0]

PFTXT = '''s_lshl_b32 s44, s2, 2
s_add_u32 s44, s44, WREG
v_lshlrev_b32 v3, 7, v2
s_cmp_ge_u32 s44, 320
s_cbranch_scc1 L1_pf1TAG
s_lshl_b32 s45, s44, 13
buffer_load_dword v216, v3, s[8:11], s45 offen
s_branch L1_pfdTAG
L1_pf1TAG:
s_cmp_ge_u32 s44, 590
s_cbranch_scc1 L1_pf2TAG
s_sub_u32 s45, s44, 320
s_lshl_b32 s45, s45, 13
buffer_load_dword v216, v3, s[12:15], s45 offen
s_branch L1_pfdTAG
L1_pf2TAG:
s_sub_u32 s45, s44, 590
s_lshl_b32 s45, s45, 13
buffer_load_dword v216, v3, s[16:19], s45 offen
L1_pfdTAG:
'''
WDP_OFF = 0x800000

K1_XB = 16384
K1_WB = 14336
K1_BUF = K1_XB + 2*K1_WB
K1_NBUF = 3
K1_LDS = K1_BUF * K1_NBUF
K1_NST = 10
K1_EPITCH = 240
K1_EMAT = 128 * K1_EPITCH
K1_EPI = K1_BUF

def gen_k1(e):
    NST, NB = K1_NST, K1_NBUF
    e(f"""
.globl geglu_k1_kernel
.p2align 8
.type geglu_k1_kernel,@function
geglu_k1_kernel:
s_cmp_ge_u32 s2, 256
s_cbranch_scc1 L1_end
s_load_dwordx4 s[4:7], s[0:1], 0
s_load_dwordx4 s[28:31], s[0:1], 16
s_load_dwordx2 s[52:53], s[0:1], 48
v_lshrrev_b32 v1, 6, v0
v_and_b32 v2, 63, v0
v_lshlrev_b32 v3, 7, v2
v_readfirstlane_b32 s40, v1
s_mov_b32 s63, 0x00020000
s_lshl_b32 s44, s40, 8
s_add_u32 s44, s44, s2
s_sub_u32 s45, s44, 320
s_sub_u32 s46, s44, 590
s_waitcnt lgkmcnt(0)
s_mov_b32 s60, s4
s_mov_b32 s61, s5
s_mov_b32 s62, 2621440
s_cmp_ge_u32 s44, 320
s_cselect_b32 s60, s6, s60
s_cselect_b32 s61, s7, s61
s_cselect_b32 s62, 2211840, s62
s_cselect_b32 s47, s45, s44
s_cmp_ge_u32 s44, 590
s_cselect_b32 s60, s28, s60
s_cselect_b32 s61, s29, s61
s_cselect_b32 s47, s46, s47
s_and_b32 s61, s61, 0xffff
s_lshl_b32 s47, s47, 13
buffer_load_dword v216, v3, s[60:63], s47 offen
s_and_b32 s32, s2, 7
s_lshr_b32 s33, s2, 3
s_lshr_b32 s34, s32, 2
s_and_b32 s35, s32, 3
s_and_b32 s36, s33, 7
s_lshl_b32 s34, s34, 3
s_add_u32 s34, s34, s36
s_lshr_b32 s36, s33, 3
s_lshl_b32 s35, s35, 2
s_add_u32 s35, s35, s36
s_mul_i32 s36, s35, 27
s_lshr_b32 s36, s36, 2
s_lshl_b32 s37, s36, 5
s_lshl_b32 s38, s34, 7
s_mov_b32 s8, s4
s_and_b32 s9, s5, 0xffff
s_mov_b32 s10, 2621440
s_mov_b32 s11, 0x00020000
s_mov_b32 s12, s6
s_and_b32 s13, s7, 0xffff
s_mov_b32 s14, 2211840
s_mov_b32 s15, 0x00020000
s_mov_b32 s16, s28
s_and_b32 s17, s29, 0xffff
s_mov_b32 s18, 2211840
s_mov_b32 s19, 0x00020000
s_mov_b32 s20, s52
s_and_b32 s21, s53, 0xffff
s_mov_b32 s22, 7077888
s_mov_b32 s23, 0x00020000
s_mov_b32 s3, {K1_BUF}
s_cmp_lt_u32 s40, 4
s_cbranch_scc1 L1_compute
""")
    st = Stamps(e)
    st.rt(0)
    st.st()
    if PFW:
        e("s_sub_u32 s41, s40, 4")
        e(PFTXT.replace('WREG','s41').replace('TAG','w'))
    e(f"""
s_sub_u32 s41, s40, 4
s_lshr_b32 s42, s41, 1
s_and_b32 s43, s41, 1
s_cmp_eq_u32 s42, 0
s_cselect_b32 s24, s12, s16
s_cselect_b32 s25, s13, s17
s_mov_b32 s26, 2211840
s_mov_b32 s27, 0x00020000
v_lshrrev_b32 v3, 3, v2
v_and_b32 v4, 7, v2
v_lshrrev_b32 v5, 4, v2
s_lshl_b32 s44, s41, 5
s_add_u32 s44, s44, s38
v_add_u32 v3, s44, v3
v_mov_b32 v6, 0x500
v_mul_lo_u32 v3, v3, v6
v_xor_b32 v6, v4, v5
v_lshlrev_b32 v6, 4, v6
v_add_u32 v16, v3, v6
v_xor_b32 v6, 64, v6
v_add_u32 v17, v3, v6
v_add_u32 v17, 10240, v17
v_add_u32 v18, 20480, v16
v_add_u32 v19, 20480, v17
s_mul_i32 s44, s43, 448
s_lshl_b32 s45, s41, 12
s_mul_i32 s46, s42, {K1_WB}
s_mul_i32 s47, s43, 7168
s_add_u32 s46, s46, s47
s_add_u32 s46, s46, {K1_XB}
s_mov_b32 s48, 0
s_mov_b32 s49, 0
s_mov_b32 s54, 0
""")
    for dd in range(7):
        e(f"""
v_add_u32 v3, {64*dd}, v2
v_add_u32 v3, s44, v3
v_mul_u32_u24 v4, 4682, v3
v_lshrrev_b32 v4, 16, v4
v_mul_u32_u24 v5, 14, v4
v_sub_u32 v5, v3, v5
v_and_b32 v6, 0x33, v4
v_bfe_u32 v7, v4, 2, 1
v_lshl_add_u32 v6, v7, 3, v6
v_bfe_u32 v7, v4, 3, 1
v_lshl_add_u32 v6, v7, 2, v6
v_mul_u32_u24 v6, 0xd80, v6
v_lshl_add_u32 v6, v5, 4, v6
v_add_u32 v{20+dd}, s37, v6
""")
    def issue():
        for dd in range(4):
            e(f"s_add_u32 m0, s45, {dd*1024}")
            e("s_nop 0")
            e(f"buffer_load_dwordx4 v{16+dd}, s[8:11], s48 offen lds")
        for dd in range(7):
            e(f"s_add_u32 m0, s46, {dd*1024}")
            e("s_nop 0")
            e(f"buffer_load_dwordx4 v{20+dd}, s[24:27], s49 offen lds")
        e(f"""
s_add_u32 s48, s48, 128
s_add_u32 s49, s49, 221184
s_add_u32 s54, s54, 1
s_cmp_eq_u32 s54, 3
s_cselect_b32 s55, {K1_BUF - 3*K1_BUF}, s3
s_cselect_b32 s54, 0, s54
s_add_u32 s45, s45, s55
s_add_u32 s46, s46, s55
""")
    if PFW: e("s_waitcnt vmcnt(0)")
    issue()
    e(f"""
s_mov_b32 s60, s30
s_and_b32 s61, s31, 0xffff
s_mov_b32 s62, 2211840
s_mov_b32 s63, 0x00020000
s_add_u32 s56, s52, {WDP_OFF}
s_addc_u32 s57, s53, 0
s_and_b32 s57, s57, 0xffff
s_mov_b32 s58, 2211840
s_mov_b32 s59, 0x00020000
s_lshl_b32 s50, s2, 3
s_lshl_b32 s51, s41, 1
s_add_u32 s50, s50, s51
""")
    for i in range(3):
        e(f"""
v_add_u32 v3, {64*i}, v2
v_cmp_le_u32 vcc, 80, v3
s_nop 1
v_cndmask_b32 v4, 0, 1, vcc
v_mul_u32_u24 v5, 80, v4
v_sub_u32 v5, v3, v5
v_add_u32 v4, s50, v4
v_mul_u32_u24 v6, 0x500, v4
v_lshl_add_u32 v{30+i}, v5, 4, v6
v_mul_u32_u24 v6, 6554, v5
v_lshrrev_b32 v6, 16, v6
v_mul_u32_u24 v7, 10, v6
v_sub_u32 v7, v5, v7
v_mov_b32 v8, 276480
v_mul_lo_u32 v6, v6, v8
v_lshl_add_u32 v6, v7, 4, v6
v_and_b32 v7, 0xfffffff3, v4
v_bfe_u32 v8, v4, 2, 1
v_lshl_add_u32 v7, v8, 3, v7
v_bfe_u32 v8, v4, 3, 1
v_lshl_add_u32 v7, v8, 2, v7
v_mul_u32_u24 v7, 160, v7
v_add_u32 v{33+i}, v6, v7
""")
    e("""
v_cmp_le_u32 vcc, 32, v2
v_mov_b32 v3, 0x10000000
s_mov_b32 s51, 0
s_cmp_ge_u32 s2, 216
s_cselect_b32 s51, 0x10000000, s51
v_cndmask_b32 v32, v32, v3, vcc
v_cndmask_b32 v35, v35, v3, vcc
v_or_b32 v33, s51, v33
v_or_b32 v34, s51, v34
v_or_b32 v35, s51, v35
""")
    for i in range(3):
        e(f"buffer_load_dwordx4 v[{40+4*i}:{43+4*i}], v{30+i}, s[60:63], 0 offen")
    e("s_waitcnt vmcnt(3)")
    e("s_barrier")
    st.st()
    issue()
    e("s_mov_b32 s39, 0")
    e("L1_lloop:")
    issue()
    e("""
s_waitcnt vmcnt(11)
s_barrier
s_add_u32 s39, s39, 1
s_cmp_lt_u32 s39, 8
s_cbranch_scc1 L1_lloop
s_waitcnt vmcnt(0)
s_barrier
""")
    st.st()
    for i in range(3):
        e(f"buffer_store_dwordx4 v[{40+4*i}:{43+4*i}], v{33+i}, s[56:59], 0 offen {STPOL}")
    e("s_branch L1_epi")
    e("L1_compute:")
    XA, XB, WA, WB, ACC = 16, 32, 48, 76, 104

    e(f"""
s_and_b32 s41, s40, 1
s_lshr_b32 s42, s40, 1
v_and_b32 v3, 15, v2
v_lshrrev_b32 v4, 4, v2
v_lshrrev_b32 v5, 1, v3
s_lshl_b32 s43, s41, 13
v_lshlrev_b32 v6, 7, v3
v_add_u32 v6, s43, v6
v_xor_b32 v7, v4, v5
v_lshlrev_b32 v7, 4, v7
v_add_u32 v8, v6, v7
v_xor_b32 v9, 64, v8
v_lshrrev_b32 v5, 1, v4
v_lshlrev_b32 v5, 4, v5
v_and_b32 v6, 1, v4
v_lshl_add_u32 v5, v6, 2, v5
v_bfe_u32 v6, v2, 2, 2
v_add_u32 v5, v5, v6
v_mul_u32_u24 v5, 224, v5
v_and_b32 v6, 3, v2
v_lshl_add_u32 v5, v6, 3, v5
s_mul_i32 s43, s42, {K1_WB}
s_add_u32 s43, s43, {K1_XB}
v_add_u32 v10, s43, v5
s_lshl_b32 s43, s41, 6
v_add_u32 v3, s43, v3
v_mul_u32_u24 v3, {K1_EPITCH}, v3
v_lshl_add_u32 v3, v4, 3, v3
s_mul_i32 s43, s42, {K1_EMAT}
s_add_u32 s43, s43, {K1_EPI}
v_add_u32 v3, s43, v3
s_mov_b32 s54, 0
s_mov_b32 s39, 1
""")
    def reads(ks, X, W):
        r = []
        xa = 'v8' if ks == 0 else 'v9'
        for rb in range(4):
            r.append(f"ds_read_b128 v[{X+4*rb}:{X+4*rb+3}], {xa} offset:{rb*2048}")
        for cb in range(7):
            for h in range(2):
                off = (32*ks + 8*h)*224 + 32*cb
                r.append(f"ds_read_b64_tr_b16 v[{W+4*cb+2*h}:{W+4*cb+2*h+1}], v10 offset:{off}")
        return r
    def mfmas(X, W, first=False):
        m = []
        for cb in range(7):
            for rb in range(4):
                a = ACC + 4*(rb*7+cb)
                c = "0" if first else f"v[{a}:{a+3}]"
                m.append(f"v_mfma_f32_16x16x32_bf16 v[{a}:{a+3}], v[{W+4*cb}:{W+4*cb+3}], v[{X+4*rb}:{X+4*rb+3}], {c}")
        return m
    e("s_barrier")
    for r in reads(0,XA,WA): e(r)
    for r in reads(1,XB,WB): e(r)
    e("s_waitcnt lgkmcnt(15)")
    for m in mfmas(XA,WA,True): e(m)
    e("L1_cloop:")
    e(f"""
s_add_u32 s54, s54, 1
s_cmp_eq_u32 s54, 3
s_cselect_b32 s55, {K1_BUF - 3*K1_BUF}, s3
s_cselect_b32 s54, 0, s54
s_waitcnt lgkmcnt(0)
v_add_u32 v8, s55, v8
v_add_u32 v9, s55, v9
v_add_u32 v10, s55, v10
s_barrier
""")
    for x in interleave(mfmas(XB,WB), reads(0,XA,WA), lead=1): e(x)
    e("s_waitcnt lgkmcnt(0)")
    for x in interleave(mfmas(XA,WA), reads(1,XB,WB), lead=1): e(x)
    e("""
s_add_u32 s39, s39, 1
s_cmp_lt_u32 s39, 10
s_cbranch_scc1 L1_cloop
s_waitcnt lgkmcnt(0)
""")
    tmps = [16+2*i for i in range(8)] + [48+2*i for i in range(14)]
    def cw(i):
        cb, rb = i//4, i%4
        a = ACC + 4*(rb*7+cb)
        tt = tmps[i % len(tmps)]
        e(f"v_cvt_pk_bf16_f32 v{tt}, v{a}, v{a+1}")
        e(f"v_cvt_pk_bf16_f32 v{tt+1}, v{a+2}, v{a+3}")
        e(f"ds_write_b64 v3, v[{tt}:{tt+1}] offset:{rb*16*K1_EPITCH + cb*32}")
    LAG = 8
    for i, m in enumerate(mfmas(XB,WB)):
        e(m)
        if i >= LAG: cw(i-LAG)
    e("s_nop 7")
    for i in range(28-LAG, 28): cw(i)
    e("s_waitcnt lgkmcnt(0)")
    e("L1_epi:")
    e(f"""
v_mul_u32_u24 v10, 4682, v0
v_lshrrev_b32 v10, 16, v10
v_mul_u32_u24 v11, 14, v10
v_sub_u32 v11, v0, v11
v_mul_u32_u24 v12, {K1_EPITCH}, v10
v_lshl_add_u32 v12, v11, 4, v12
v_add_u32 v12, {K1_EPI}, v12
v_mul_u32_u24 v13, 0xd80, v10
v_lshl_add_u32 v13, v11, 4, v13
v_mov_b32 v4, {hex(f2u(C0))}
v_mov_b32 v5, {hex(f2u(C0))}
v_mov_b32 v6, {hex(f2u(C1))}
v_mov_b32 v7, {hex(f2u(C1))}
v_mov_b32 v8, 1.0
v_mov_b32 v9, 1.0
s_mul_i32 s44, s38, 3456
s_add_u32 s44, s44, s37
s_mov_b32 s39, 0
s_barrier
""")
    st.st()
    if STAMP: e("s_waitcnt lgkmcnt(0)")
    e("s_cmp_ge_u32 s40, 7")
    e("s_cbranch_scc1 L1_fin")
    G, U = 56, 60
    GN, UN = 64, 68
    e(f"ds_read_b128 v[{GN}:{GN+3}], v12")
    e(f"ds_read_b128 v[{UN}:{UN+3}], v12 offset:{K1_EMAT}")
    e("L1_eloop:")
    base = 72
    g = [base + 2*j for j in range(4)]
    u = [base + 8 + 2*j for j in range(4)]
    t = [base + 16 + 2*j for j in range(4)]
    o = base + 24
    e("s_waitcnt lgkmcnt(0)")
    for j in range(4):
        e(f"v_lshlrev_b32 v{g[j]}, 16, v{GN+j}")
        e(f"v_and_b32 v{g[j]+1}, 0xffff0000, v{GN+j}")
    for j in range(4):
        e(f"v_lshlrev_b32 v{u[j]}, 16, v{UN+j}")
        e(f"v_and_b32 v{u[j]+1}, 0xffff0000, v{UN+j}")
    e(f"v_add_u32 v12, {32*K1_EPITCH}, v12")
    e(f"ds_read_b128 v[{GN}:{GN+3}], v12")
    e(f"ds_read_b128 v[{UN}:{UN+3}], v12 offset:{K1_EMAT}")
    for j in range(4):
        e(f"v_pk_mul_f32 v[{t[j]}:{t[j]+1}], v[{g[j]}:{g[j]+1}], v[{g[j]}:{g[j]+1}]")
    for j in range(4):
        e(f"v_pk_fma_f32 v[{t[j]}:{t[j]+1}], v[{t[j]}:{t[j]+1}], v[6:7], v[4:5]")
    for j in range(4):
        e(f"v_pk_mul_f32 v[{t[j]}:{t[j]+1}], v[{t[j]}:{t[j]+1}], v[{g[j]}:{g[j]+1}]")
    for j in range(4):
        e(f"v_exp_f32 v{t[j]}, v{t[j]}")
        e(f"v_exp_f32 v{t[j]+1}, v{t[j]+1}")
    e("s_nop 0")
    for j in range(4):
        e(f"v_pk_add_f32 v[{t[j]}:{t[j]+1}], v[{t[j]}:{t[j]+1}], v[8:9]")
    for j in range(4):
        e(f"v_rcp_f32 v{t[j]}, v{t[j]}")
        e(f"v_rcp_f32 v{t[j]+1}, v{t[j]+1}")
    e("s_nop 0")
    for j in range(4):
        e(f"v_pk_mul_f32 v[{t[j]}:{t[j]+1}], v[{t[j]}:{t[j]+1}], v[{g[j]}:{g[j]+1}]")
    for j in range(4):
        e(f"v_cvt_pk_bf16_f32 v{g[j]}, v{t[j]}, v{t[j]+1}")
    for j in range(4):
        e(f"v_lshlrev_b32 v{t[j]}, 16, v{g[j]}")
        e(f"v_and_b32 v{t[j]+1}, 0xffff0000, v{g[j]}")
    for j in range(4):
        e(f"v_pk_mul_f32 v[{t[j]}:{t[j]+1}], v[{t[j]}:{t[j]+1}], v[{u[j]}:{u[j]+1}]")
    for j in range(4):
        e(f"v_cvt_pk_bf16_f32 v{o+j}, v{t[j]}, v{t[j]+1}")
    e(f"buffer_store_dwordx4 v[{o}:{o+3}], v13, s[20:23], s44 offen {STPOL}")
    e(f"""
s_add_u32 s44, s44, {32*3456}
s_add_u32 s39, s39, 1
s_cmp_lt_u32 s39, 4
s_cbranch_scc1 L1_eloop
""")
    e("L1_fin:")
    st.st()
    if STAMP: e("s_waitcnt vmcnt(0)")
    st.st()
    st.rt(1)
    if STAMP: e("s_waitcnt lgkmcnt(0)")
    st.flush("L1_nost", 4)
    e("L1_end:")
    e("s_endpgm")

K2_HB = 8192
K2_WB = 10240
K2_BUF = K2_HB + K2_WB
K2_NBUF = 8
K2_LDS = K2_BUF*K2_NBUF
K2_NST = 27

def gen_k2(e):
    NST, NB = K2_NST, K2_NBUF
    e(f"""
.globl geglu_k2_kernel
.p2align 8
.type geglu_k2_kernel,@function
geglu_k2_kernel:
s_cmp_ge_u32 s2, 256
s_cbranch_scc1 L2_end
s_load_dwordx2 s[6:7], s[0:1], 32
s_load_dwordx2 s[30:31], s[0:1], 48
s_and_b32 s32, s2, 7
s_lshr_b32 s33, s2, 3
s_lshr_b32 s34, s32, 1
s_and_b32 s35, s32, 1
s_and_b32 s36, s33, 7
s_lshl_b32 s34, s34, 3
s_add_u32 s34, s34, s36
s_lshr_b32 s36, s33, 3
s_lshl_b32 s35, s35, 2
s_add_u32 s35, s35, s36
s_mul_i32 s37, s35, 160
s_lshl_b32 s38, s34, 6
v_lshrrev_b32 v1, 6, v0
v_and_b32 v2, 63, v0
s_nop 0
v_readfirstlane_b32 s40, v1
s_waitcnt lgkmcnt(0)
s_mov_b32 s8, s30
s_and_b32 s9, s31, 0xffff
s_mov_b32 s10, 7077888
s_mov_b32 s11, 0x00020000
s_add_u32 s12, s30, {WDP_OFF}
s_addc_u32 s13, s31, 0
s_and_b32 s13, s13, 0xffff
s_mov_b32 s14, 2211840
s_mov_b32 s15, 0x00020000
s_mov_b32 s20, s6
s_and_b32 s21, s7, 0xffff
s_mov_b32 s22, 2621440
s_mov_b32 s23, 0x00020000
s_mov_b32 s3, {K2_BUF}
s_cmp_lt_u32 s40, 4
s_cbranch_scc1 L2_compute
""")
    st = Stamps(e)
    st.rt(0)
    st.st()
    e(f"""
s_sub_u32 s41, s40, 4
s_lshr_b32 s42, s41, 1
s_and_b32 s43, s41, 1
v_lshrrev_b32 v3, 3, v2
v_and_b32 v4, 7, v2
v_lshrrev_b32 v5, 4, v2
s_lshl_b32 s44, s41, 4
s_add_u32 s44, s44, s38
v_add_u32 v3, s44, v3
v_mov_b32 v6, 0xd80
v_mul_lo_u32 v3, v3, v6
v_xor_b32 v6, v4, v5
v_lshlrev_b32 v6, 4, v6
v_add_u32 v16, v3, v6
v_xor_b32 v6, 64, v6
v_add_u32 v17, v3, v6
v_add_u32 v17, 27648, v17
s_mul_i32 s44, s42, 5120
s_mul_i32 s47, s43, 3072
s_add_u32 s44, s44, s47
s_mul_i32 s47, s35, 276480
s_add_u32 s47, s47, s44
v_lshlrev_b32 v20, 4, v2
v_add_u32 v20, s47, v20
v_add_u32 v21, 1024, v20
v_add_u32 v22, 2048, v20
s_lshl_b32 s45, s41, 11
s_add_u32 s46, s44, {K2_HB}
s_mov_b32 s48, 0
s_mov_b32 s49, 0
s_mov_b32 s54, 0
s_mov_b32 s39, 0
s_cmp_eq_u32 s43, 1
s_cbranch_scc1 L2_loader_odd
""")
    def loader(nw, tag, stamps):
        n = 2 + nw
        def issue():
            for dd in range(2):
                e(f"s_add_u32 m0, s45, {dd*1024}")
                e("s_nop 0")
                e(f"buffer_load_dwordx4 v{16+dd}, s[8:11], s48 offen lds")
            for dd in range(nw):
                e(f"s_add_u32 m0, s46, {dd*1024}")
                e("s_nop 0")
                e(f"buffer_load_dwordx4 v{20+dd}, s[12:15], s49 offen lds")
            e(f"""
s_add_u32 s48, s48, 128
s_add_u32 s49, s49, 10240
s_add_u32 s54, s54, 1
s_cmp_eq_u32 s54, {NB}
s_cselect_b32 s55, {K2_BUF - NB*K2_BUF}, s3
s_cselect_b32 s54, 0, s54
s_add_u32 s45, s45, s55
s_add_u32 s46, s46, s55
""")
        e(f"L2_pl{tag}:")
        issue()
        e(f"""
s_add_u32 s39, s39, 1
s_cmp_lt_u32 s39, {NB-1}
s_cbranch_scc1 L2_pl{tag}
s_mov_b32 s39, 0
""")
        if stamps: st.st()
        e(f"L2_ml{tag}:")
        e(f"s_waitcnt vmcnt({n*(NB-2)})")
        e("s_barrier")
        issue()
        e(f"""
s_add_u32 s39, s39, 1
s_cmp_lt_u32 s39, {NST-NB+1}
s_cbranch_scc1 L2_ml{tag}
""")
        if stamps: st.st()
        for s in range(NST-NB+1, NST):
            e(f"s_waitcnt vmcnt({n*(NST-1-s)})")
            e("s_barrier")
        if stamps: st.st()
    loader(3, 'a', True)
    st.rt(1)
    if STAMP: e("s_waitcnt lgkmcnt(0)")
    st.flush("L2_nost", 4)
    e("s_branch L2_end")
    e("L2_loader_odd:")
    loader(2, 'b', False)
    e("s_branch L2_end")
    e("L2_compute:")
    SA, SB, ACC = 40, 88, 136
    e(f"""
v_and_b32 v30, 15, v2
v_lshrrev_b32 v31, 4, v2
v_lshrrev_b32 v32, 1, v30
v_xor_b32 v32, v31, v32
v_lshlrev_b32 v32, 4, v32
v_lshl_add_u32 v32, v30, 7, v32
s_lshl_b32 s43, s40, 11
v_add_u32 v4, s43, v32
v_xor_b32 v5, 64, v4
v_lshrrev_b32 v33, 1, v31
v_lshlrev_b32 v33, 4, v33
v_and_b32 v34, 1, v31
v_lshl_add_u32 v33, v34, 2, v33
v_bfe_u32 v34, v2, 2, 2
v_add_u32 v33, v33, v34
v_mul_u32_u24 v33, 160, v33
v_and_b32 v34, 3, v2
v_lshl_add_u32 v33, v34, 3, v33
v_add_u32 v6, {K2_HB}, v33
s_lshl_b32 s43, s40, 4
v_add_u32 v3, s43, v30
v_mul_u32_u24 v3, 0x500, v3
v_lshl_add_u32 v3, v31, 3, v3
s_mul_i32 s44, s38, 1280
s_add_u32 s44, s44, s37
s_mov_b32 s54, 0
s_mov_b32 s39, 0
""")
    for i in range(20):
        e(f"v_mov_b32 v{ACC+i}, 0")
    def reads(S):
        r = []
        for ks in range(2):
            xa = 'v4' if ks == 0 else 'v5'
            r.append(f"ds_read_b128 v[{S+4*ks}:{S+4*ks+3}], {xa}")
            for cb in range(5):
                for h in range(2):
                    off = (32*ks + 8*h)*160 + 32*cb
                    w = S + 8 + 20*ks + 4*cb + 2*h
                    r.append(f"ds_read_b64_tr_b16 v[{w}:{w+1}], v6 offset:{off}")
        return r
    def mfmas(S):
        m = []
        for ks in range(2):
            for cb in range(5):
                a = ACC + 4*cb
                w = S + 8 + 20*ks + 4*cb
                m.append(f"v_mfma_f32_16x16x32_bf16 v[{a}:{a+3}], v[{w}:{w+3}], v[{S+4*ks}:{S+4*ks+3}], v[{a}:{a+3}]")
        return m
    def adv():
        e(f"""
s_add_u32 s54, s54, 1
s_cmp_eq_u32 s54, {NB}
s_cselect_b32 s55, {K2_BUF - NB*K2_BUF}, s3
s_cselect_b32 s54, 0, s54
s_waitcnt lgkmcnt(0)
v_add_u32 v4, s55, v4
v_add_u32 v5, s55, v5
v_add_u32 v6, s55, v6
s_barrier
""")
    def stage(Snew, Sold):
        rd = reads(Snew); mf = mfmas(Sold)
        o = []
        for i, m in enumerate(mf):
            o += rd[2*i:2*i+2]; o.append(m)
        o += rd[20:]
        for x in o: e(x)
    e("s_barrier")
    for r in reads(SA): e(r)
    e("L2_cloop:")
    adv(); stage(SB, SA)
    adv(); stage(SA, SB)
    e("""
s_add_u32 s39, s39, 1
s_cmp_lt_u32 s39, 13
s_cbranch_scc1 L2_cloop
s_waitcnt lgkmcnt(0)
""")
    for m in mfmas(SA): e(m)
    e("s_nop 7")
    for cb in range(5):
        a = ACC + 4*cb
        e(f"v_cvt_pk_bf16_f32 v{40+2*cb}, v{a}, v{a+1}")
        e(f"v_cvt_pk_bf16_f32 v{41+2*cb}, v{a+2}, v{a+3}")
        e(f"buffer_store_dwordx2 v[{40+2*cb}:{41+2*cb}], v3, s[20:23], s44 offen offset:{32*cb}")
    e("L2_end:")
    e("s_endpgm")

def desc(name, vgpr):
    acc = (vgpr + 3)//4*4
    return f"""
.amdhsa_kernel {name}
  .amdhsa_next_free_vgpr {vgpr}
  .amdhsa_next_free_sgpr 102
  .amdhsa_accum_offset {acc}
  .amdhsa_group_segment_fixed_size 0
  .amdhsa_kernarg_size 56
  .amdhsa_user_sgpr_count 2
  .amdhsa_user_sgpr_kernarg_segment_ptr 1
  .amdhsa_system_sgpr_workgroup_id_x 1
.end_amdhsa_kernel
"""

def main():
    e = E()
    gen_k1(e)
    gen_k2(e)
    out = HDR % (K1_LDS, K2_LDS) + e.text()
    out += '.section .rodata,"a"\n.p2align 6' + desc('geglu_k1_kernel', 224)
    out += '.p2align 6' + desc('geglu_k2_kernel', 160)
    path = sys.argv[1] if len(sys.argv) > 1 else 'standalone__geglu_ffn__prompt.s'
    open(path, 'w').write(out)

main()
```
